```python
import torch

def _softmax(x, axis=-1):
    return torch.softmax(x, dim=axis)
def _gelu(x):
    return torch.nn.functional.gelu(x, approximate="tanh")
def _silu(x):
    return torch.nn.functional.silu(x)
def _sigmoid(x):
    return torch.sigmoid(x)
def _layernorm(x, axis=-1, eps=1e-5):
    m = x.mean(dim=axis, keepdim=True)
    v = x.var(dim=axis, keepdim=True, unbiased=False)
    return (x - m) / torch.sqrt(v + eps)
def _scatter_add(tgt, idx, src, axis=0):
    return tgt.clone().index_add_(axis, idx, src)
def _segment_sum(src, seg, n):
    out = torch.zeros((n,) + src.shape[1:], dtype=src.dtype)
    return out.index_add_(0, seg, src)
def _pad(x, pw):
    flat = tuple(v for pair in reversed(pw) for v in pair)
    return torch.nn.functional.pad(x, flat)

kernel_name = 'parallel_sum__sliding_block_cached__glu_gated_bilinear__decode'

def setup_inputs():

    _w = (lambda a: (lambda t: t.to(torch.bfloat16) if t.is_floating_point() else t)(torch.as_tensor(a)))
    def _A_setup():
        B, Sq, D = 4, 1, 1024
        Hq, Hkv, Sk, Dh = 32, 4, 8192, 128
        assert Hq % Hkv == 0, (Hq, Hkv)
        return {
            "x": _w((lambda *s: torch.randn(*s, dtype=torch.bfloat16) * 0.05)(B, Sq, D)),
            "k_cache": _w((lambda *s: torch.randn(*s, dtype=torch.bfloat16) * 1.6)(B, Hkv, Sk, Dh)),
            "v_cache": _w((lambda *s: torch.randn(*s, dtype=torch.bfloat16) * 0.8)(B, Hkv, Sk, Dh)),
            "wq": _w((lambda *s: torch.randn(*s, dtype=torch.bfloat16) * 1.6)(D, Hq * Dh) * (D ** -0.5)),
            "wo": _w((lambda *s: torch.randn(*s, dtype=torch.bfloat16) * 0.8)(Hq * Dh, D) * ((Hq * Dh) ** -0.5)),
        }
    _A_in = _A_setup()

    def _B_setup():
        B, S, D, F = 4, 1, 1024, 3584
        return {
            "x": _w((lambda *s: torch.randn(*s, dtype=torch.bfloat16) * 0.05)(B, S, D)),
            "w_gate": _w((lambda *s: torch.randn(*s, dtype=torch.bfloat16) * 0.4)(D, F) * (D ** -0.5)),
            "w_up": _w((lambda *s: torch.randn(*s, dtype=torch.bfloat16) * 0.4)(D, F) * (D ** -0.5)),
            "w_down": _w((lambda *s: torch.randn(*s, dtype=torch.bfloat16) * 0.4)(F, D) * (F ** -0.5)),
        }
    _B_in = _B_setup()

    return {
        "A_x": _A_in["x"],
        "A_k_cache": _A_in["k_cache"],
        "A_v_cache": _A_in["v_cache"],
        "A_wq": _A_in["wq"],
        "A_wo": _A_in["wo"],
        "B_x": _B_in["x"],
        "B_w_gate": _B_in["w_gate"],
        "B_w_up": _B_in["w_up"],
        "B_w_down": _B_in["w_down"],
    }

def reference(A_x, A_k_cache, A_v_cache, A_wq, A_wo, B_x, B_w_gate, B_w_up, B_w_down):
    def _A_ref(x, k_cache, v_cache, wq, wo):
        B, Sq, D = x.shape
        Hq, Dh = 32, 128
        Hkv, Sk = k_cache.shape[1], k_cache.shape[2]
        W = min(4096, max(256, Sk // 4))
        rep = Hq // Hkv
        q = (lambda x, *d: x.permute(*d))((x @ wq).reshape(B, Sq, Hq, Dh), 0, 2, 1, 3)
        k = (lambda x, n, axis: torch.repeat_interleave(x, n, dim=axis))(k_cache[:, :, Sk - W:, :], rep, axis=1)
        v = (lambda x, n, axis: torch.repeat_interleave(x, n, dim=axis))(v_cache[:, :, Sk - W:, :], rep, axis=1)
        scores = torch.einsum("bhqd,bhkd->bhqk", q, k) * (Dh ** -0.5)
        p = _softmax(scores, axis=-1)
        o = torch.einsum("bhqk,bhkd->bhqd", p, v)
        return (lambda x, *d: x.permute(*d))(o, 0, 2, 1, 3).reshape(B, Sq, Hq * Dh) @ wo

    def _B_ref(x, w_gate, w_up, w_down):
        g = torch.einsum("bsd,df->bsf", x, w_gate)
        u = torch.einsum("bsd,df->bsf", x, w_up)
        h = g * u
        return torch.einsum("bsf,fd->bsd", h, w_down)

    x = A_x
    xn = _layernorm(x, axis=-1)
    return x + _A_ref(xn, A_k_cache, A_v_cache, A_wq, A_wo) + _B_ref(xn, B_w_gate, B_w_up, B_w_down)
```

```python
import re

_RANGE = re.compile(r"^([vs])\[(\d+):(\d+)\]$")
_SINGLE = re.compile(r"^([vs])(\d+)$")


def regs(op):
    if op is None:
        return set()
    op = str(op).strip()
    neg = op.startswith("-")
    if neg:
        op = op[1:]
    if op.startswith("abs(") or op.startswith("|"):
        op = op.strip("|")
        op = op.replace("abs(", "").rstrip(")")
    m = _RANGE.match(op)
    if m:
        return {(m.group(1), i) for i in range(int(m.group(2)), int(m.group(3)) + 1)}
    m = _SINGLE.match(op)
    if m:
        return {(m.group(1), int(m.group(2)))}
    if op == "vcc":
        return {("s", 106), ("s", 107)}
    if op == "exec":
        return {("s", 126), ("s", 127)}
    if op == "m0":
        return {("s", 124)}
    return set()


def v(n, cnt=1):
    return f"v{n}" if cnt == 1 else f"v[{n}:{n + cnt - 1}]"


def s(n, cnt=1):
    return f"s{n}" if cnt == 1 else f"s[{n}:{n + cnt - 1}]"


TRANS = ("v_exp_f32", "v_log_f32", "v_rcp_f32", "v_rsq_f32", "v_sqrt_f32", "v_sin_f32", "v_cos_f32")


class Rec:
    __slots__ = ("kind", "w", "r", "flags", "passes", "creads", "pos")

    def __init__(self, kind, w, r, flags=(), passes=0, creads=None):
        self.kind, self.w, self.r, self.flags, self.passes = kind, w, r, set(flags), passes
        self.creads = creads or set()
        self.pos = 0


class Asm:
    def __init__(self):
        self.lines = []
        self.hist = []
        self.pos = 0
        self.vm = []
        self.nlabel = 0
        self.maxv = 0

    def _emit(self, text):
        self.lines.append("    " + text)

    def comment(self, text):
        self.lines.append("    ; " + text)

    def _need(self, P, I):
        need = 0
        pv = {x for x in P.w if x[0] == "v"}
        ps = {x for x in P.w if x[0] == "s"}
        if P.kind in ("valu", "trans"):
            if I.kind == "mfma" and pv & I.r:
                need = max(need, 2)
            if "dpp" in I.flags and pv & I.r:
                need = max(need, 2)
            if "permlane" in I.flags and pv & (I.r | I.w):
                need = max(need, 2)
            if "readlane" in I.flags and pv & I.r:
                need = max(need, 1)
            if P.kind == "trans" and pv & (I.r | I.w):
                need = max(need, 1)
            if ps:
                if I.kind in ("valu", "trans", "mfma") and ps & I.r:
                    need = max(need, 4 if "readlane" in I.flags else 2)
                if I.kind in ("vld", "vst") and ps & I.r:
                    need = max(need, 5)
                if I.kind == "salu" and ps & I.r:
                    need = max(need, 1)
        if P.kind == "mfma":
            big = {4: 8, 8: 12}[P.passes]
            if I.kind == "mfma":
                ab = I.r - I.creads
                if pv & ab:
                    need = max(need, big)
                elif pv & I.creads:
                    if I.creads == pv and I.passes == P.passes:
                        pass
                    else:
                        need = max(need, big)
                elif pv & I.w:
                    need = max(need, big)
            elif pv & (I.r | I.w):
                need = max(need, big)
            if I.kind in ("valu", "trans") and P.creads & I.w:
                need = max(need, {4: 3, 8: 7}[P.passes])
        if P.kind == "salu" and ("s", 124) in P.w and "ldsdma" in I.flags:
            need = max(need, 1)
        if P.kind == "vst" and "wide" in P.flags:
            if P.creads & I.w:
                need = max(need, 2)
        return need

    def _issue(self, text, rec):
        n = 0
        for P in self.hist:
            d = self.pos - P.pos - 1
            need = self._need(P, rec)
            if need - d > n:
                n = need - d
        if n > 0:
            self.nop(n)
        rec.pos = self.pos
        self.pos += 1
        self.hist.append(rec)
        self.hist = [h for h in self.hist if self.pos - h.pos <= 14]
        for k, i in rec.w | rec.r:
            if k == "v":
                self.maxv = max(self.maxv, i + 1)
        self._emit(text)

    def nop(self, n):
        while n > 0:
            k = min(n, 16)
            self._emit(f"s_nop {k - 1}")
            self.pos += k
            n -= k

    def flush(self):
        n = 0
        for P in self.hist:
            d = self.pos - P.pos - 1
            if P.kind == "mfma":
                need = {4: 8, 8: 12}[P.passes]
            elif P.kind in ("valu", "trans"):
                need = 5 if any(x[0] == "s" for x in P.w) else 2
            elif P.kind == "vst":
                need = 2
            else:
                need = 1 if ("s", 124) in P.w else 0
            n = max(n, need - d)
        if n > 0:
            self.nop(n)
        self.hist = []

    def label(self, name):
        self.flush()
        self.lines.append(f"{name}:")

    def newlabel(self, base="L"):
        self.nlabel += 1
        return f"{base}_{self.nlabel}"

    def branch(self, op, target):
        self.flush()
        self._emit(f"{op} {target}")
        self.pos += 1

    def salu(self, op, dst, *src, wr=None):
        w = regs(dst) if wr is None else set().union(*[regs(x) for x in wr]) if wr else set()
        r = set().union(*[regs(x) for x in src]) if src else set()
        if op.startswith("s_cmp") or op.startswith("s_bitcmp"):
            r |= regs(dst)
            w = set()
        txt = f"{op} " + ", ".join(str(x) for x in (dst,) + src)
        self._issue(txt, Rec("salu", w, r))

    def raw(self, text):
        self._issue(text, Rec("other", set(), set()))

    def valu(self, op, dst, *src, mods=""):
        flags = []
        kind = "trans" if op in TRANS else "valu"
        w = regs(dst)
        r = set().union(*[regs(x) for x in src]) if src else set()
        if op.startswith("v_fmac") or op.startswith("v_dot2c"):
            r |= w
        if "dpp" in op:
            flags.append("dpp")
            r |= w
        if op.startswith("v_permlane"):
            flags.append("permlane")
            w = regs(dst) | regs(src[0])
            r = set(w)
        if op.startswith("v_readlane") or op.startswith("v_readfirstlane"):
            flags.append("readlane")
        if op.startswith("v_cndmask") and len(src) == 2:
            r |= regs("vcc")
        txt = f"{op} " + ", ".join(str(x) for x in (dst,) + src)
        if mods:
            txt += " " + mods
        self._issue(txt, Rec(kind, w, r, flags))

    def mfma(self, op, d, a, b, c):
        passes = 8 if "32x32" in op else 4
        cr = regs(c)
        self._issue(f"{op} {d}, {a}, {b}, {c}", Rec("mfma", regs(d), regs(a) | regs(b) | cr, (), passes, cr))

    def vload(self, name, op, dst, vaddr, srd, soff, mods=""):
        va = "off" if vaddr is None else vaddr
        m = ("" if vaddr is None else "offen ") + mods
        txt = f"{op} {dst}, {va}, {srd}, {soff} {m}".rstrip()
        self._issue(txt, Rec("vld", regs(dst), regs(vaddr) | regs(srd) | regs(soff)))
        self.vm.append(name)

    def vload_lds(self, name, op, vaddr, srd, soff, mods=""):
        txt = f"{op} {vaddr}, {srd}, {soff} offen {mods} lds".replace("  ", " ")
        self._issue(txt, Rec("vld", set(), regs(vaddr) | regs(srd) | regs(soff) | regs("m0"), ("ldsdma",)))
        self.vm.append(name)

    def vstore(self, name, op, data, vaddr, srd, soff, mods=""):
        va = "off" if vaddr is None else vaddr
        m = ("" if vaddr is None else "offen ") + mods
        txt = f"{op} {data}, {va}, {srd}, {soff} {m}".rstrip()
        flags = ("wide",) if ("x4" in op or "x3" in op) else ()
        self._issue(txt, Rec("vst", set(), regs(data) | regs(vaddr) | regs(srd) | regs(soff), flags, 0, regs(data)))
        self.vm.append(name)

    def vwait(self, name):
        idx = max(i for i, n in enumerate(self.vm) if n == name)
        n = len(self.vm) - 1 - idx
        assert n <= 63
        self.raw(f"s_waitcnt vmcnt({n})")

    def vwait_all(self):
        self.raw("s_waitcnt vmcnt(0)")

    def ds_read(self, op, dst, addr, offset=0):
        o = f" offset:{offset}" if offset else ""
        self._issue(f"{op} {dst}, {addr}{o}", Rec("dsr", regs(dst), regs(addr)))

    def ds_write(self, op, addr, data, offset=0):
        o = f" offset:{offset}" if offset else ""
        self._issue(f"{op} {addr}, {data}{o}", Rec("dsw", set(), regs(addr) | regs(data)))

    def lgkm(self, n=0):
        self.raw(f"s_waitcnt lgkmcnt({n})")

    def barrier(self):
        self.raw("s_waitcnt lgkmcnt(0)")
        self.raw("s_barrier")

    def text(self):
        return "\n".join(self.lines) + "\n"


class VAlloc:
    def __init__(self, start=1):
        self.n = start

    def get(self, cnt=1, align=None):
        al = align or (1 if cnt == 1 else 2 if cnt == 2 else 4)
        self.n = (self.n + al - 1) // al * al
        r = self.n
        self.n += cnt
        return r
```

```python
import sys, os
sys.path.insert(0, os.path.dirname(os.path.abspath(__file__)))
from asmdsl import Asm, VAlloc, v, s

KNAME = "parallel_sum__sliding_block_cached__glu_gated_bilinear__decode_kernel"

EPOCH_OFF = 0
QP_OFF = 0x100000
OP_OFF = 0x200000
ML_OFF = 0x300000
GU_OFF = 0x400000
FP_OFF = 0x500000
ST_OFF = 0x800000
WS_SIZE = 0x10000000

QT_OFF = 0
QT_STR = 272
MLW_OFF = 2176
OT_OFF = 2688
OT_STR = 320
HT_OFF = 3968
PT_OFF = 5376
XN_OFF = 13568
XN_STR = 4160
RS_OFF = 30208
KL_OFF = 46592
LDS_BYTES = 79360

LOG2E = "0x3fb8aa3b"
SCALE = "0x3db504f3"
EPS = "0x3727c5ac"
HI16 = "0xffff0000"
TAGC = (0x11, 0x4a, 0xc7, 0x8e)
RETRY_MAX = 20000

sWV = 3
P_X, P_K, P_V, P_WQ, P_WO, P_BX, P_G, P_U, P_D, P_OUT, P_DBG, P_WS = [4 + 2 * i for i in range(12)]
R_X, R_K, R_V, R_WQ, R_WO, R_GU, R_WD, R_OUT, R_WS = [28 + 4 * i for i in range(9)]
sE = 64
sT = [65, 66, 67, 68]
sT32 = 69
sSelA, sSelB = 70, 71
sSoQ, sSoKV, sSoG, sSoO = 72, 73, 74, 75
sA, sB, sC, sD = 76, 77, 78, 79
sQPst, sQG, sOPst, sMLst, sGUst, sOG, sMLG, sGUG, sFPst, sFG, sOutOff = range(80, 91)
sXq = 91
sFail = 92
sRetry = 94
sXg = 95
sTmp = 96
sTmp2 = 97
sStamp = 98


def gen(cfg):
    a = Asm()
    va = VAlloc(1)
    STAMPS = cfg.get("stamps", False)
    NT = cfg.get("nt", "nt")

    def srd(r):
        return s(r, 4)

    vLane = va.get()
    vM0 = va.get(); vM1 = va.get()
    vFF = va.get()
    vOffQ = va.get(); vOffG = va.get(); vOffO = va.get(); vOffV = va.get()
    vOffK = [va.get() for _ in range(4)]
    vXA = va.get()
    vXG = va.get()
    vRSW = va.get()
    vL16 = va.get()
    vI16 = va.get()
    vQ32 = va.get()
    vStamp = va.get()
    vE = va.get()
    vXF = va.get(2)
    vT = [va.get() for _ in range(8)]
    vWQ = va.get(16)
    vV = va.get(16)
    vGU = va.get(32)
    vWO = va.get(16)
    vWD = va.get(16)
    vG = va.get(32)
    vAcc = va.get(16)
    vAccG = va.get(8)
    vXD = va.get(8)
    vA = va.get(16)
    vF = va.get(16)
    vKf = va.get(16)
    vQf = va.get(16)

    nstamp = [0]

    def stamp():
        if not STAMPS:
            return
        i = nstamp[0]
        nstamp[0] += 1
        a.raw(f"s_memrealtime {s(sStamp, 2)}")
        a.raw("s_waitcnt lgkmcnt(0)")
        a.valu("v_writelane_b32", v(vStamp), s(sStamp), i)

    def stamp_store():
        if not STAMPS:
            return
        a.salu("s_lshl_b32", s(sTmp), "s2", 3)
        a.salu("s_add_u32", s(sTmp), s(sTmp), s(sWV))
        a.salu("s_lshl_b32", s(sTmp), s(sTmp), 7)
        a.salu("s_add_u32", s(sTmp), s(sTmp), ST_OFF)
        a.valu("v_lshlrev_b32", v(vT[0]), 2, v(vLane))
        a.salu("s_mov_b32", "exec_hi", 0)
        a.vstore("stamp", "buffer_store_dword", v(vStamp), v(vT[0]), srd(R_WS), s(sTmp))
        a.salu("s_mov_b64", "exec", -1)

    def bfly(op, x, tmp, kinds):
        for k in kinds:
            if k[0] == "r":
                a.valu(op + "_dpp", v(x), v(x), v(x), mods=f"row_ror:{k[1:]} row_mask:0xf bank_mask:0xf")
            else:
                a.valu("v_mov_b32", v(tmp), v(x))
                a.valu(f"v_permlane{k[1:]}_swap_b32", v(x), v(tmp))
                a.valu(op, v(x), v(x), v(tmp))

    def bfly_multi(op, xs, tmps, kinds):
        for k in kinds:
            if k[0] == "r":
                for x in xs:
                    a.valu(op + "_dpp", v(x), v(x), v(x), mods=f"row_ror:{k[1:]} row_mask:0xf bank_mask:0xf")
            else:
                for x, t in zip(xs, tmps):
                    a.valu("v_mov_b32", v(t), v(x))
                for x, t in zip(xs, tmps):
                    a.valu(f"v_permlane{k[1:]}_swap_b32", v(x), v(t))
                for x, t in zip(xs, tmps):
                    a.valu(op, v(x), v(x), v(t))

    def tag(r):
        for i in range(4):
            a.valu("v_bfi_b32", v(r + i), v(vFF), s(sT[i]), v(r + i))

    def check(r, first):
        a.valu("v_perm_b32", v(vT[0]), v(r + 1), v(r), s(sSelA))
        a.valu("v_perm_b32", v(vT[1]), v(r + 3), v(r + 2), s(sSelB))
        a.valu("v_or_b32", v(vT[0]), v(vT[0]), v(vT[1]))
        if first:
            a.valu("v_cmp_ne_u32", s(sFail, 2), s(sT32), v(vT[0]))
        else:
            a.valu("v_cmp_ne_u32", "vcc", s(sT32), v(vT[0]))
            a.salu("s_or_b64", s(sFail, 2), s(sFail, 2), "vcc")

    def gather(name, loads, after_first=None):
        def issue(tagname):
            for i, (d, vo, so, imm) in enumerate(loads):
                a.vload(f"{tagname}{i}", "buffer_load_dwordx4", v(d, 4), v(vo), srd(R_WS), s(so),
                        (f"offset:{imm} " if imm else "") + "sc1")
        issue(name)
        if after_first:
            after_first()
        a.vwait(f"{name}{len(loads) - 1}")
        Lchk = a.newlabel("Lchk")
        Lok = a.newlabel("Lok")
        a.salu("s_mov_b32", s(sRetry), 0)
        a.label(Lchk)
        for i, (d, vo, so, imm) in enumerate(loads):
            check(d, i == 0)
        a.salu("s_cmp_eq_u64", s(sFail, 2), 0)
        a.branch("s_cbranch_scc1", Lok)
        a.salu("s_add_u32", s(sRetry), s(sRetry), 1)
        a.salu("s_cmp_ge_u32", s(sRetry), RETRY_MAX)
        a.branch("s_cbranch_scc1", Lok)
        snap = list(a.vm)
        issue(name + "r")
        a.vwait_all()
        a.vm = snap
        a.branch("s_branch", Lchk)
        a.label(Lok)

    def sparseA(dst, xd):
        a.valu("v_and_b32", v(dst), v(xd), v(vM0))
        a.valu("v_and_b32", v(dst + 1), v(xd), v(vM1))

    def gemv_step(acc, areg, wreg, first):
        c0 = "0" if first else v(acc, 4)
        c1 = "0" if first else v(acc + 4, 4)
        a.mfma("v_mfma_f32_16x16x16_bf16", v(acc, 4), v(areg, 2), v(wreg, 2), c0)
        a.mfma("v_mfma_f32_16x16x16_bf16", v(acc + 4, 4), v(areg, 2), v(wreg + 2, 2), c1)

    def stream(name, dst, voff, rs, sbase, add):
        if add == 0:
            so = s(sbase)
        else:
            a.salu("s_add_u32", s(sTmp), s(sbase), add)
            so = s(sTmp)
        a.vload(name, "buffer_load_dwordx4", v(dst, 4), v(voff), srd(rs), so, NT)

    def reduce_rs(nparts, addr_reg, part_stride, out):
        for p in range(nparts):
            a.ds_read("ds_read_b128", v(vG + 4 * p, 4), v(addr_reg), p * part_stride)
        a.lgkm(0)
        n = nparts
        cur = [vG + 4 * p for p in range(nparts)]
        while len(cur) > 1:
            nxt = []
            for i in range(0, len(cur), 2):
                dst = out if len(cur) == 2 else cur[i]
                for e in range(4):
                    a.valu("v_add_f32", v(dst + e), v(cur[i] + e), v(cur[i + 1] + e))
                nxt.append(dst)
            cur = nxt

    a.salu("s_cmp_ge_u32", "s2", 256)
    a.branch("s_cbranch_scc1", "L_end")
    if STAMPS:
        a.valu("v_mov_b32", v(vStamp), 0)
    stamp()
    a.raw("s_load_dwordx16 s[4:19], s[0:1], 0")
    a.raw("s_load_dwordx8 s[20:27], s[0:1], 64")
    a.valu("v_lshrrev_b32", v(vT[0]), 6, "v0")
    a.valu("v_and_b32", v(vLane), 63, "v0")
    a.valu("v_readfirstlane_b32", s(sWV), v(vT[0]))
    vJ, vS = vT[1], vT[2]
    a.valu("v_and_b32", v(vJ), 15, v(vLane))
    a.valu("v_lshrrev_b32", v(vS), 4, v(vLane))
    a.valu("v_lshlrev_b32", v(vI16), 4, v(vJ))
    a.valu("v_lshlrev_b32", v(vL16), 4, v(vLane))
    a.valu("v_lshlrev_b32", v(vT[3]), 5, v(vLane))
    a.valu("v_lshl_add_u32", v(vOffQ), v(vS), 15, v(vI16))
    a.salu("s_lshr_b32", s(sA), "s2", 5)
    a.salu("s_lshl_b32", s(sA), s(sA), 7)
    a.salu("s_lshl_b32", s(sB), s(sWV), 4)
    a.salu("s_add_u32", s(sA), s(sA), s(sB))
    a.salu("s_lshl_b32", s(sXq), s(sA), 2)
    a.salu("s_lshl_b32", s(sSoQ), s(sA), 13)
    a.salu("s_and_b32", s(sB), "s2", 31)
    a.salu("s_lshl_b32", s(sB), s(sB), 8)
    a.salu("s_add_u32", s(sSoQ), s(sSoQ), s(sB))
    a.salu("s_and_b32", s(sC), s(sWV), 3)
    a.salu("s_lshl_b32", s(sC), s(sC), 11)
    a.raw("s_waitcnt lgkmcnt(0)")
    def mk(r, p, size):
        a.salu("s_mov_b32", s(r), s(p))
        a.salu("s_mov_b32", s(r + 1), s(p + 1))
        a.salu("s_mov_b32", s(r + 2), size)
        a.salu("s_mov_b32", s(r + 3), "0x00020000")
    mk(R_X, P_X, 8192)
    vX = vG
    a.vload("x0", "buffer_load_dwordx4", v(vX, 4), v(vT[3]), srd(R_X), s(sC))
    a.vload("x1", "buffer_load_dwordx4", v(vX + 4, 4), v(vT[3]), srd(R_X), s(sC), "offset:16")
    mk(R_WQ, P_WQ, 8388608)
    for t in range(4):
        stream(f"wq{t}", vWQ + 4 * t, vOffQ, R_WQ, sSoQ, t * 8192)
    mk(R_WS, P_WS, WS_SIZE)
    a.vload("ep", "buffer_load_dword", v(vE), None, srd(R_WS), 0, "sc1")
    a.salu("s_and_b32", s(sA), "s2", 7)
    a.salu("s_lshr_b32", s(sB), "s2", 7)
    a.salu("s_lshl_b32", s(sB), s(sB), 3)
    a.salu("s_add_u32", s(sA), s(sA), s(sB))
    a.salu("s_lshr_b32", s(sB), "s2", 3)
    a.salu("s_and_b32", s(sB), s(sB), 15)
    a.salu("s_lshl_b32", s(sSoKV), s(sA), 13)
    a.salu("s_lshl_b32", s(sC), s(sB), 7)
    a.salu("s_add_u32", s(sSoKV), s(sSoKV), s(sC))
    a.salu("s_lshl_b32", s(sC), s(sWV), 4)
    a.salu("s_add_u32", s(sSoKV), s(sSoKV), s(sC))
    a.salu("s_add_u32", s(sSoKV), s(sSoKV), 6144)
    a.salu("s_lshl_b32", s(sSoKV), s(sSoKV), 8)
    a.valu("v_xor_b32", v(vT[4]), v(vJ), v(vS))
    a.valu("v_lshlrev_b32", v(vT[4]), 4, v(vT[4]))
    a.valu("v_lshl_add_u32", v(vOffK[0]), v(vS), 8, v(vT[4]))
    for t in range(1, 4):
        a.valu("v_xor_b32", v(vOffK[t]), 64 * t if t == 1 else hex(64 * t), v(vOffK[0]))
    mk(R_K, P_K, 33554432)
    a.salu("s_lshl_b32", s(sC), s(sWV), 12)
    a.salu("s_add_u32", s(sC), s(sC), KL_OFF)
    a.salu("s_mov_b32", "m0", s(sC))
    for t in range(4):
        a.vload_lds(f"k{t}", "buffer_load_dwordx4", v(vOffK[t]), srd(R_K), s(sSoKV),
                    (f"offset:{1024 * t} " if t else "") + NT)
    a.salu("s_lshl_b32", s(sC), s(sA), 3)
    a.salu("s_add_u32", s(sC), s(sC), s(sWV))
    a.salu("s_lshl_b32", s(sQG), s(sC), 12)
    a.salu("s_add_u32", s(sQG), s(sQG), QP_OFF)
    a.salu("s_and_b32", s(sC), s(sA), 3)
    a.salu("s_lshl_b32", s(sC), s(sC), 3)
    a.salu("s_add_u32", s(sC), s(sC), s(sWV))
    a.salu("s_lshr_b32", s(sD), s(sA), 2)
    a.salu("s_lshl_b32", s(sOPst), s(sC), 15)
    a.salu("s_lshl_b32", s(sTmp), s(sD), 12)
    a.salu("s_add_u32", s(sOPst), s(sOPst), s(sTmp))
    a.salu("s_lshl_b32", s(sTmp), s(sB), 8)
    a.salu("s_add_u32", s(sOPst), s(sOPst), s(sTmp))
    a.salu("s_add_u32", s(sOPst), s(sOPst), OP_OFF)
    a.salu("s_lshl_b32", s(sMLst), s(sC), 2)
    a.salu("s_add_u32", s(sMLst), s(sMLst), s(sD))
    a.salu("s_lshl_b32", s(sMLst), s(sMLst), 4)
    a.salu("s_add_u32", s(sMLst), s(sMLst), s(sB))
    a.salu("s_lshl_b32", s(sMLst), s(sMLst), 4)
    a.salu("s_add_u32", s(sMLst), s(sMLst), ML_OFF)
    a.salu("s_lshr_b32", s(sA), s(sWV), 1)
    a.salu("s_and_b32", s(sB), s(sWV), 1)
    a.salu("s_lshl_b32", s(sC), s(sA), 5)
    a.salu("s_and_b32", s(sD), "s2", 31)
    a.salu("s_add_u32", s(sC), s(sC), s(sD))
    a.salu("s_lshl_b32", s(sC), s(sC), 3)
    a.salu("s_lshr_b32", s(sD), "s2", 5)
    a.salu("s_add_u32", s(sC), s(sC), s(sD))
    a.salu("s_lshl_b32", s(sQPst), s(sC), 9)
    a.salu("s_lshl_b32", s(sD), s(sB), 8)
    a.salu("s_add_u32", s(sQPst), s(sQPst), s(sD))
    a.salu("s_add_u32", s(sQPst), s(sQPst), QP_OFF)
    a.salu("s_and_b32", s(sC), "s2", 7)
    a.salu("s_lshr_b32", s(sD), "s2", 5)
    a.salu("s_lshl_b32", s(sD), s(sD), 3)
    a.salu("s_add_u32", s(sC), s(sC), s(sD))
    a.salu("s_lshr_b32", s(sD), "s2", 3)
    a.salu("s_and_b32", s(sD), s(sD), 3)
    a.salu("s_lshl_b32", s(sSoO), s(sC), 17)
    a.salu("s_lshl_b32", s(sTmp), s(sA), 15)
    a.salu("s_add_u32", s(sSoO), s(sSoO), s(sTmp))
    a.salu("s_lshl_b32", s(sTmp), s(sD), 9)
    a.salu("s_add_u32", s(sSoO), s(sSoO), s(sTmp))
    a.salu("s_lshl_b32", s(sTmp), s(sB), 8)
    a.salu("s_add_u32", s(sSoO), s(sSoO), s(sTmp))
    a.salu("s_lshl_b32", s(sOG), s(sC), 14)
    a.salu("s_lshl_b32", s(sTmp), s(sA), 12)
    a.salu("s_add_u32", s(sOG), s(sOG), s(sTmp))
    a.salu("s_lshl_b32", s(sTmp), s(sB), 7)
    a.salu("s_add_u32", s(sOG), s(sOG), s(sTmp))
    a.salu("s_add_u32", s(sOG), s(sOG), OP_OFF)
    a.salu("s_lshr_b32", s(sMLG), s(sC), 1)
    a.salu("s_lshl_b32", s(sMLG), s(sMLG), 2)
    a.salu("s_add_u32", s(sMLG), s(sMLG), s(sA))
    a.salu("s_lshl_b32", s(sMLG), s(sMLG), 8)
    a.salu("s_add_u32", s(sMLG), s(sMLG), ML_OFF)
    a.salu("s_lshl_b32", s(sGUG), s(sC), 2)
    a.salu("s_add_u32", s(sGUG), s(sGUG), s(sA))
    a.salu("s_lshl_b32", s(sGUG), s(sGUG), 11)
    a.salu("s_add_u32", s(sGUG), s(sGUG), s(sTmp))
    a.salu("s_add_u32", s(sGUG), s(sGUG), GU_OFF)
    a.salu("s_lshl_b32", s(sFPst), s(sD), 6)
    a.salu("s_add_u32", s(sFPst), s(sFPst), s(sC))
    a.salu("s_lshl_b32", s(sFPst), s(sFPst), 2)
    a.salu("s_add_u32", s(sFPst), s(sFPst), s(sA))
    a.salu("s_lshl_b32", s(sFPst), s(sFPst), 10)
    a.salu("s_lshl_b32", s(sTmp), s(sB), 9)
    a.salu("s_add_u32", s(sFPst), s(sFPst), s(sTmp))
    a.salu("s_add_u32", s(sFPst), s(sFPst), FP_OFF)
    a.salu("s_lshr_b32", s(sC), "s2", 2)
    a.salu("s_cmp_ge_u32", s(sC), 28)
    a.salu("s_cselect_b32", s(sD), 1, 0)
    a.salu("s_cselect_b32", s(R_GU), s(P_U), s(P_G))
    a.salu("s_cselect_b32", s(R_GU + 1), s(P_U + 1), s(P_G + 1))
    a.salu("s_mov_b32", s(R_GU + 2), 7340032)
    a.salu("s_mov_b32", s(R_GU + 3), "0x00020000")
    a.salu("s_mul_i32", s(sTmp), s(sD), 28)
    a.salu("s_sub_u32", s(sC), s(sC), s(sTmp))
    a.salu("s_and_b32", s(sTmp), "s2", 3)
    a.salu("s_lshl_b32", s(sTmp2), s(sTmp), 8)
    a.salu("s_lshl_b32", s(sXg), s(sWV), 5)
    a.salu("s_add_u32", s(sTmp2), s(sTmp2), s(sXg))
    a.salu("s_lshl_b32", s(sXg), s(sTmp2), 2)
    a.salu("s_mul_i32", s(sSoG), s(sTmp2), 7168)
    a.salu("s_lshl_b32", s(sTmp2), s(sC), 8)
    a.salu("s_add_u32", s(sSoG), s(sSoG), s(sTmp2))
    a.salu("s_lshl_b32", s(sGUst), s(sC), 1)
    a.salu("s_add_u32", s(sGUst), s(sGUst), s(sB))
    a.salu("s_lshl_b32", s(sGUst), s(sGUst), 2)
    a.salu("s_add_u32", s(sGUst), s(sGUst), s(sA))
    a.salu("s_lshl_b32", s(sGUst), s(sGUst), 1)
    a.salu("s_add_u32", s(sGUst), s(sGUst), s(sD))
    a.salu("s_lshl_b32", s(sGUst), s(sGUst), 2)
    a.salu("s_add_u32", s(sGUst), s(sGUst), s(sTmp))
    a.salu("s_lshl_b32", s(sGUst), s(sGUst), 8)
    a.salu("s_add_u32", s(sGUst), s(sGUst), GU_OFF)
    a.salu("s_lshr_b32", s(sC), "s2", 6)
    a.salu("s_and_b32", s(sD), "s2", 63)
    a.salu("s_lshl_b32", s(sOutOff), s(sC), 11)
    a.salu("s_lshl_b32", s(sTmp), s(sD), 5)
    a.salu("s_add_u32", s(sOutOff), s(sOutOff), s(sTmp))
    a.salu("s_lshr_b32", s(sTmp), s(sD), 4)
    a.salu("s_lshl_b32", s(sFG), s(sTmp), 18)
    a.salu("s_lshl_b32", s(sTmp), s(sC), 10)
    a.salu("s_add_u32", s(sFG), s(sFG), s(sTmp))
    a.salu("s_and_b32", s(sTmp), s(sD), 15)
    a.salu("s_lshl_b32", s(sTmp), s(sTmp), 6)
    a.salu("s_add_u32", s(sFG), s(sFG), s(sTmp))
    a.salu("s_add_u32", s(sFG), s(sFG), FP_OFF)
    a.valu("v_and_b32", v(vT[4]), 3, v(vLane))
    a.valu("v_lshlrev_b32", v(vT[5]), 3, v(vT[4]))
    a.vload("xf", "buffer_load_dwordx2", v(vXF, 2), v(vT[5]), srd(R_X), s(sOutOff))
    mk(R_V, P_V, 33554432)
    mk(R_WO, P_WO, 8388608)
    mk(R_WD, P_D, 7340032)
    mk(R_OUT, P_OUT, 8192)
    a.salu("s_mov_b32", s(sSelA), "0x0c0c0400")
    a.salu("s_mov_b32", s(sSelB), "0x04000c0c")
    a.valu("v_mov_b32", v(vFF), "0xff")
    a.valu("v_and_b32", v(vT[5]), 1, v(vLane))
    a.valu("v_lshlrev_b32", v(vT[5]), 4, v(vT[5]))
    a.valu("v_mov_b32", v(vT[6]), "0xffff")
    a.valu("v_lshlrev_b32", v(vT[6]), v(vT[5]), v(vT[6]))
    a.valu("v_cmp_gt_u32", "vcc", 2, v(vT[4]))
    a.valu("v_cndmask_b32", v(vM0), 0, v(vT[6]), "vcc")
    a.valu("v_cndmask_b32", v(vM1), v(vT[6]), 0, "vcc")
    a.valu("v_mul_u32_u24", v(vOffG), "0xe000", v(vS))
    a.valu("v_add_u32", v(vOffG), v(vOffG), v(vI16))
    a.valu("v_lshl_add_u32", v(vOffO), v(vS), 13, v(vI16))
    a.valu("v_lshl_add_u32", v(vOffV), v(vS), 10, v(vI16))
    a.valu("v_lshrrev_b32", v(vT[4]), 2, v(vJ))
    a.valu("v_mul_u32_u24", v(vT[5]), XN_STR, v(vT[4]))
    a.valu("v_lshl_add_u32", v(vXA), v(vS), 4, v(vT[5]))
    a.valu("v_add_u32", v(vXA), s(sXq), v(vXA))
    a.valu("v_lshl_add_u32", v(vXG), v(vS), 5, v(vT[5]))
    a.valu("v_add_u32", v(vXG), s(sXg), v(vXG))
    a.salu("s_lshl_b32", s(sC), s(sWV), 11)
    a.salu("s_add_u32", s(sC), s(sC), RS_OFF)
    a.valu("v_lshlrev_b32", v(vT[5]), 5, v(vJ))
    a.valu("v_lshl_add_u32", v(vRSW), v(vS), 9, v(vT[5]))
    a.valu("v_add_u32", v(vRSW), s(sC), v(vRSW))
    a.valu("v_and_b32", v(vQ32), 31, v(vLane))
    a.valu("v_lshlrev_b32", v(vQ32), 4, v(vQ32))

    a.vwait("x1")
    stamp()
    F = vA
    for i in range(8):
        a.valu("v_lshlrev_b32", v(F + 2 * i), 16, v(vX + i))
        a.valu("v_and_b32", v(F + 2 * i + 1), HI16, v(vX + i))
    S_ = vF
    for i in range(8):
        a.valu("v_add_f32", v(S_ + i), v(F + 2 * i), v(F + 2 * i + 1))
    for w_ in (4, 2, 1):
        for i in range(w_):
            a.valu("v_add_f32", v(S_ + i), v(S_ + i), v(S_ + i + w_))
    ALL = ["r8", "r4", "r2", "r1", "p16", "p32"]
    bfly("v_add_f32", S_, S_ + 1, ALL)
    vMean = vF + 2
    a.valu("v_mul_f32", v(vMean), "0x3a800000", v(S_))
    Dv = vKf
    for i in range(16):
        a.valu("v_sub_f32", v(Dv + i), v(F + i), v(vMean))
    Q0, Q1 = vF + 4, vF + 5
    a.valu("v_mul_f32", v(Q0), v(Dv), v(Dv))
    a.valu("v_mul_f32", v(Q1), v(Dv + 1), v(Dv + 1))
    for i in range(2, 16, 2):
        a.valu("v_fmac_f32", v(Q0), v(Dv + i), v(Dv + i))
        a.valu("v_fmac_f32", v(Q1), v(Dv + i + 1), v(Dv + i + 1))
    a.valu("v_add_f32", v(Q0), v(Q0), v(Q1))
    bfly("v_add_f32", Q0, Q1, ALL)
    a.valu("v_mul_f32", v(Q0), "0x3a800000", v(Q0))
    def rbf(x):
        a.valu("v_cvt_pk_bf16_f32", v(x), v(x), v(x))
        a.valu("v_and_b32", v(x), HI16, v(x))
    rbf(vMean)
    rbf(Q0)
    a.valu("v_add_f32", v(Q0), EPS, v(Q0))
    rbf(Q0)
    a.valu("v_sqrt_f32", v(Q0), v(Q0))
    rbf(Q0)
    a.valu("v_rcp_f32", v(Q1), v(Q0))
    Lh = a.newlabel("Lhalf")
    a.salu("s_cmp_lt_u32", s(sWV), 4)
    a.branch("s_cbranch_scc1", Lh)
    for i in range(8):
        a.valu("v_mov_b32", v(F + i), v(F + 8 + i))
    a.label(Lh)
    for i in range(8):
        a.valu("v_sub_f32", v(F + i), v(F + i), v(vMean))
    for i in range(8):
        rbf(F + i)
    for i in range(8):
        a.valu("v_mul_f32", v(Dv + i), v(F + i), v(Q1))
    for i in range(8):
        a.valu("v_fma_f32", v(F + i), "-" + v(Dv + i), v(Q0), v(F + i))
    for i in range(8):
        a.valu("v_fmac_f32", v(Dv + i), v(F + i), v(Q1))
    for i in range(8):
        a.valu("v_cvt_pk_bf16_f32", v(Dv + i), v(Dv + i), v(Dv + i))
    a.salu("s_and_b32", s(sC), s(sWV), 3)
    a.salu("s_mul_i32", s(sC), s(sC), XN_STR)
    a.salu("s_lshr_b32", s(sD), s(sWV), 2)
    a.salu("s_lshl_b32", s(sD), s(sD), 5)
    a.salu("s_add_u32", s(sC), s(sC), s(sD))
    a.valu("v_lshlrev_b32", v(vT[0]), 6, v(vLane))
    a.valu("v_add_u32", v(vT[0]), s(sC), v(vT[0]))
    a.ds_write("ds_write_b128", v(vT[0]), v(Dv, 4), XN_OFF)
    a.ds_write("ds_write_b128", v(vT[0]), v(Dv + 4, 4), XN_OFF + 16)
    a.barrier()
    stamp()

    a.ds_read("ds_read_b128", v(vXD, 4), v(vXA), XN_OFF)
    a.lgkm(0)
    for t in range(4):
        sparseA(vA + 2 * t, vXD + t)
    for t in range(4):
        a.vwait(f"wq{t}")
        gemv_step(vAcc, vA + 2 * t, vWQ + 4 * t, t == 0)
    for t in range(4):
        a.vload(f"v{t}", "buffer_load_dwordx4", v(vV + 4 * t, 4), v(vOffV), srd(R_V), s(sSoKV),
                (f"offset:{256 * t} " if t else "") + NT)
    a.vwait("ep")
    a.valu("v_readfirstlane_b32", s(sE), v(vE))
    for i in range(4):
        a.salu("s_add_u32", s(sT[i]), s(sE), TAGC[i])
        a.salu("s_and_b32", s(sT[i]), s(sT[i]), "0xff")
    a.salu("s_lshl_b32", s(sTmp), s(sT[1]), 8)
    a.salu("s_or_b32", s(sT32), s(sT[0]), s(sTmp))
    a.salu("s_lshl_b32", s(sTmp), s(sT[2]), 16)
    a.salu("s_or_b32", s(sT32), s(sT32), s(sTmp))
    a.salu("s_lshl_b32", s(sTmp), s(sT[3]), 24)
    a.salu("s_or_b32", s(sT32), s(sT32), s(sTmp))
    a.ds_write("ds_write_b128", v(vRSW), v(vAcc, 4), 0)
    a.ds_write("ds_write_b128", v(vRSW), v(vAcc + 4, 4), 16)
    a.barrier()
    stamp()
    a.salu("s_lshl_b32", s(sC), s(sWV), 8)
    a.salu("s_add_u32", s(sC), s(sC), RS_OFF)
    vRD16 = vT[7]
    a.valu("v_add_u32", v(vRD16), s(sC), v(vI16))
    reduce_rs(8, vRD16, 2048, vF)
    tag(vF)
    a.salu("s_mov_b64", "exec", "0xffff")
    a.vstore("qp", "buffer_store_dwordx4", v(vF, 4), v(vI16), srd(R_WS), s(sQPst), "sc1")
    a.salu("s_mov_b64", "exec", -1)
    stamp()

    a.salu("s_cmp_ge_u32", "s2", 224)
    a.branch("s_cbranch_scc1", "L_nogu")
    snap_vm = list(a.vm)
    snap_stamp = nstamp[0]

    def rest(has_gu):
        def gu_load(t):
            stream(f"gu{t}", vGU + 4 * t, vOffG, R_GU, sSoG, t * 7168)

        def gu_mfma(t):
            a.vwait(f"gu{t}")
            gemv_step(vAccG, vA + 2 * t, vGU + 4 * t, t == 0)

        def wo_load(t):
            stream(f"wo{t}", vWO + 4 * t, vOffO, R_WO, sSoO, t * 2048)

        def wd_load(t):
            stream(f"wd{t}", vWD + 4 * t, vOffO, R_WD, sSoO, t * 2048)

        vAG = vWQ
        if has_gu:
            for t in range(4):
                gu_load(t)
            a.ds_read("ds_read_b128", v(vXD, 4), v(vXG), XN_OFF)
            a.ds_read("ds_read_b128", v(vXD + 4, 4), v(vXG), XN_OFF + 16)
            a.lgkm(0)
            for t in range(8):
                sparseA(vAG + 2 * t, vXD + t)

            def gu_mfma(t):
                a.vwait(f"gu{t}")
                gemv_step(vAccG, vAG + 2 * t, vGU + 4 * t, t == 0)
            for t in range(cfg.get("gu_before_qg", 2)):
                gu_mfma(t)
        else:
            a.vwait("v3")
        stamp()

        def after_qg():
            if has_gu:
                for t in range(4, 8):
                    gu_load(t)
                for t in range(cfg.get("gu_before_qg", 2), 4):
                    gu_mfma(t)
            else:
                for t in range(4):
                    wo_load(t)
        gather("qg", [(vG + 4 * u, vL16, sQG, 1024 * u) for u in range(4)], after_qg)
        stamp()
        for e in range(4):
            a.valu("v_add_f32", v(vG + e), v(vG + e), v(vG + 4 + e))
            a.valu("v_add_f32", v(vG + 8 + e), v(vG + 8 + e), v(vG + 12 + e))
        for e in range(4):
            a.valu("v_add_f32", v(vG + e), v(vG + e), v(vG + 8 + e))
        bfly_multi("v_add_f32", [vG + e for e in range(4)], [vG + 4 + e for e in range(4)], ["p32"])
        a.valu("v_cvt_pk_bf16_f32", v(vG + 4), v(vG), v(vG + 1))
        a.valu("v_cvt_pk_bf16_f32", v(vG + 5), v(vG + 2), v(vG + 3))
        a.salu("s_mul_i32", s(sC), s(sWV), QT_STR)
        a.salu("s_add_u32", s(sC), s(sC), QT_OFF)
        a.valu("v_lshrrev_b32", v(vT[0]), 1, v(vQ32))
        a.valu("v_add_u32", v(vT[0]), s(sC), v(vT[0]))
        a.ds_write("ds_write_b64", v(vT[0]), v(vG + 4, 2), 0)
        if has_gu:
            for t in range(4):
                wo_load(t)
        a.valu("v_and_b32", v(vT[1]), 15, v(vLane))
        a.valu("v_lshrrev_b32", v(vT[2]), 4, v(vLane))
        a.valu("v_xor_b32", v(vT[3]), v(vT[1]), v(vT[2]))
        a.valu("v_lshlrev_b32", v(vT[3]), 4, v(vT[3]))
        a.valu("v_lshl_add_u32", v(vT[3]), v(vT[1]), 8, v(vT[3]))
        a.salu("s_lshl_b32", s(sD), s(sWV), 12)
        a.salu("s_add_u32", s(sD), s(sD), KL_OFF)
        a.valu("v_add_u32", v(vT[3]), s(sD), v(vT[3]))
        a.ds_read("ds_read_b128", v(vKf, 4), v(vT[3]), 0)
        for c in range(1, 4):
            a.valu("v_xor_b32", v(vT[4]), 64 * c if c == 1 else hex(64 * c), v(vT[3]))
            a.ds_read("ds_read_b128", v(vKf + 4 * c, 4), v(vT[4]), 0)
        a.valu("v_and_b32", v(vT[4]), 7, v(vLane))
        a.valu("v_mul_u32_u24", v(vT[4]), QT_STR, v(vT[4]))
        a.valu("v_lshl_add_u32", v(vT[4]), v(vT[2]), 4, v(vT[4]))
        a.barrier()
        stamp()
        for c in range(4):
            a.ds_read("ds_read_b128", v(vQf + 4 * c, 4), v(vT[4]), QT_OFF + 64 * c)
        Sx = vF
        for c in range(4):
            a.lgkm(3 - c)
            a.mfma("v_mfma_f32_16x16x32_bf16", v(Sx, 4), v(vKf + 4 * c, 4), v(vQf + 4 * c, 4),
                   "0" if c == 0 else v(Sx, 4))
        Z = vF + 4
        a.valu("v_cvt_pk_bf16_f32", v(vF + 8), v(Sx), v(Sx + 1))
        a.valu("v_cvt_pk_bf16_f32", v(vF + 9), v(Sx + 2), v(Sx + 3))
        for r in range(2):
            a.valu("v_lshlrev_b32", v(Z + 2 * r), 16, v(vF + 8 + r))
            a.valu("v_and_b32", v(Z + 2 * r + 1), HI16, v(vF + 8 + r))
        for r in range(4):
            a.valu("v_mul_f32", v(Z + r), SCALE, v(Z + r))
        a.valu("v_cvt_pk_bf16_f32", v(vF + 8), v(Z), v(Z + 1))
        a.valu("v_cvt_pk_bf16_f32", v(vF + 9), v(Z + 2), v(Z + 3))
        for r in range(2):
            a.valu("v_lshlrev_b32", v(Z + 2 * r), 16, v(vF + 8 + r))
            a.valu("v_and_b32", v(Z + 2 * r + 1), HI16, v(vF + 8 + r))
        MX, LS = vF + 10, vF + 11
        a.valu("v_max3_f32", v(MX), v(Z), v(Z + 1), v(Z + 2))
        a.valu("v_max_f32", v(MX), v(MX), v(Z + 3))
        bfly("v_max_f32", MX, vF + 12, ["p16", "p32"])
        for r in range(4):
            a.valu("v_sub_f32", v(Z + r), v(Z + r), v(MX))
        for r in range(4):
            a.valu("v_mul_f32", v(Z + r), LOG2E, v(Z + r))
        for r in range(4):
            a.valu("v_exp_f32", v(Z + r), v(Z + r))
        a.valu("v_add_f32", v(LS), v(Z), v(Z + 1))
        a.valu("v_add_f32", v(vF + 12), v(Z + 2), v(Z + 3))
        for r in range(4):
            a.valu("v_cvt_pk_bf16_f32", v(Sx + r), v(Z + r), v(Z + r))
        a.valu("v_add_f32", v(LS), v(LS), v(vF + 12))
        a.salu("s_lshl_b32", s(sC), s(sWV), 10)
        a.salu("s_add_u32", s(sC), s(sC), PT_OFF)
        a.valu("v_lshlrev_b32", v(vT[3]), 6, v(vT[1]))
        a.valu("v_lshl_add_u32", v(vT[3]), v(vT[2]), 4, v(vT[3]))
        a.valu("v_add_u32", v(vT[3]), s(sC), v(vT[3]))
        a.ds_write("ds_write_b128", v(vT[3]), v(Sx, 4), 0)
        a.valu("v_lshrrev_b32", v(vT[4]), 2, v(vT[1]))
        a.valu("v_lshlrev_b32", v(vT[4]), 6, v(vT[4]))
        a.valu("v_lshl_add_u32", v(vT[4]), v(vT[2]), 4, v(vT[4]))
        a.valu("v_add_u32", v(vT[4]), s(sC), v(vT[4]))
        a.ds_read("ds_read_b128", v(vXD, 4), v(vT[4]), 0)
        a.ds_read("ds_read_b128", v(vXD + 4, 4), v(vT[4]), 256)
        bfly("v_add_f32", LS, vF + 12, ["p16", "p32"])
        a.salu("s_lshl_b32", s(sC), s(sWV), 3)
        a.salu("s_add_u32", s(sC), s(sC), MLW_OFF)
        a.valu("v_lshlrev_b32", v(vT[3]), 6, v(vT[1]))
        a.valu("v_add_u32", v(vT[3]), s(sC), v(vT[3]))
        a.salu("s_mov_b64", "exec", "0xff")
        a.ds_write("ds_write_b64", v(vT[3]), v(MX, 2), 0)
        a.salu("s_mov_b64", "exec", -1)
        a.lgkm(0)
        for i in range(8):
            sparseA(vA + 2 * i, vXD + i)
        for t in range(4):
            for hg in range(2):
                gemv_step(vAcc + 8 * hg, vA + 2 * (4 * hg + t), vV + 4 * t, t == 0)
        a.valu("v_lshlrev_b32", v(vT[3]), 5, v(vT[1]))
        a.valu("v_lshl_add_u32", v(vT[3]), v(vT[2]), 9, v(vT[3]))
        a.valu("v_add_u32", v(vT[3]), s(sD), v(vT[3]))
        for hg in range(2):
            for hf in range(2):
                a.ds_write("ds_write_b128", v(vT[3]), v(vAcc + 8 * hg + 4 * hf, 4), hg * 2048 + hf * 16)
        a.barrier()
        stamp()
        a.salu("s_lshl_b32", s(sC), s(sWV), 6)
        a.salu("s_add_u32", s(sC), s(sC), MLW_OFF)
        a.valu("v_mov_b32", v(vT[3]), s(sC))
        MLr = vKf
        for i in range(4):
            a.ds_read("ds_read_b128", v(MLr + 4 * i, 4), v(vT[3]), 16 * i)
        a.salu("s_lshl_b32", s(sC), s(sWV), 9)
        a.salu("s_add_u32", s(sC), s(sC), KL_OFF)
        a.valu("v_add_u32", v(vT[4]), s(sC), v(vQ32))
        for p in range(8):
            a.ds_read("ds_read_b128", v(vG + 4 * p, 4), v(vT[4]), p * 4096)
        a.lgkm(8)
        Mx = vF + 4
        a.valu("v_max3_f32", v(Mx), v(MLr), v(MLr + 2), v(MLr + 4))
        a.valu("v_max3_f32", v(Mx), v(Mx), v(MLr + 6), v(MLr + 8))
        a.valu("v_max3_f32", v(Mx), v(Mx), v(MLr + 10), v(MLr + 12))
        a.valu("v_max_f32", v(Mx), v(Mx), v(MLr + 14))
        for p in range(8):
            a.valu("v_sub_f32", v(MLr + 2 * p), v(MLr + 2 * p), v(Mx))
        for p in range(8):
            a.valu("v_mul_f32", v(MLr + 2 * p), LOG2E, v(MLr + 2 * p))
        for p in range(8):
            a.valu("v_exp_f32", v(MLr + 2 * p), v(MLr + 2 * p))
        Lx = vF + 5
        a.valu("v_mul_f32", v(Lx), v(MLr), v(MLr + 1))
        for p in range(1, 8):
            a.valu("v_fmac_f32", v(Lx), v(MLr + 2 * p), v(MLr + 2 * p + 1))
        a.lgkm(0)
        for e in range(4):
            a.valu("v_mul_f32", v(vF + e), v(MLr), v(vG + e))
        for p in range(1, 8):
            for e in range(4):
                a.valu("v_fmac_f32", v(vF + e), v(MLr + 2 * p), v(vG + 4 * p + e))
        tag(vF)
        a.valu("v_and_b32", v(vT[3]), 16, v(vLane))
        a.valu("v_lshl_add_u32", v(vT[3]), v(vT[3]), 10, v(vI16))
        a.valu("v_mov_b32", v(vF + 6), 0)
        a.valu("v_mov_b32", v(vF + 7), 0)
        tag(vF + 4)
        a.salu("s_mov_b32", "exec_hi", 0)
        a.vstore("op", "buffer_store_dwordx4", v(vF, 4), v(vT[3]), srd(R_WS), s(sOPst), "sc1")
        a.salu("s_mov_b64", "exec", 1)
        a.vstore("ml", "buffer_store_dwordx4", v(vF + 4, 4), None, srd(R_WS), s(sMLst), "sc1")
        a.salu("s_mov_b64", "exec", -1)
        stamp()

        if has_gu:
            for t in range(4, 8):
                gu_mfma(t)
            for t in range(4):
                wd_load(t)
            a.ds_write("ds_write_b128", v(vRSW), v(vAccG, 4), 0)
            a.ds_write("ds_write_b128", v(vRSW), v(vAccG + 4, 4), 16)
            a.barrier()
            reduce_rs(8, vRD16, 2048, vF)
            tag(vF)
            a.salu("s_mov_b64", "exec", "0xffff")
            a.vstore("gp", "buffer_store_dwordx4", v(vF, 4), v(vI16), srd(R_WS), s(sGUst), "sc1")
            a.salu("s_mov_b64", "exec", -1)
        stamp()

        vOGo = vT[5]
        vMLo = vT[6]
        a.valu("v_lshrrev_b32", v(vT[3]), 3, v(vLane))
        a.valu("v_and_b32", v(vT[4]), 7, v(vLane))
        a.valu("v_lshlrev_b32", v(vT[4]), 4, v(vT[4]))
        a.valu("v_lshl_add_u32", v(vOGo), v(vT[3]), 8, v(vT[4]))
        a.valu("v_lshlrev_b32", v(vMLo), 4, v(vT[3]))
        if cfg.get("wait_before_og"):
            a.vwait(cfg["wait_before_og"] if has_gu else "wo3")
        lds_ = [(vG, vOGo, sOG, 0), (vG + 4, vOGo, sOG, 2048), (vG + 8, vMLo, sMLG, 0), (vG + 12, vMLo, sMLG, 128)]
        if has_gu:
            lds_.append((vG + 16, vOGo, sGUG, 0))
        gather("og", lds_)
        stamp()
        m0_, l0_, m1_, l1_ = vG + 8, vG + 9, vG + 12, vG + 13
        a.valu("v_and_b32", v(m0_), "0xffffff00", v(m0_))
        a.valu("v_and_b32", v(m1_), "0xffffff00", v(m1_))
        Mg = vF + 4
        a.valu("v_max_f32", v(Mg), v(m0_), v(m1_))
        bfly("v_max_f32", Mg, vF + 5, ["r8", "p16", "p32"])
        a.valu("v_sub_f32", v(m0_), v(m0_), v(Mg))
        a.valu("v_sub_f32", v(m1_), v(m1_), v(Mg))
        a.valu("v_mul_f32", v(m0_), LOG2E, v(m0_))
        a.valu("v_mul_f32", v(m1_), LOG2E, v(m1_))
        a.valu("v_exp_f32", v(m0_), v(m0_))
        a.valu("v_exp_f32", v(m1_), v(m1_))
        Lg = vF + 4
        a.valu("v_mul_f32", v(Lg), v(m0_), v(l0_))
        a.valu("v_fmac_f32", v(Lg), v(m1_), v(l1_))
        for e in range(4):
            a.valu("v_mul_f32", v(vF + e), v(m0_), v(vG + e))
        for e in range(4):
            a.valu("v_fmac_f32", v(vF + e), v(m1_), v(vG + 4 + e))
        bfly_multi("v_add_f32", [vF + e for e in range(5)], [vF + 8 + e for e in range(5)], ["r8", "p16", "p32"])
        a.valu("v_rcp_f32", v(Lg), v(Lg))
        for e in range(4):
            a.valu("v_mul_f32", v(vF + e), v(vF + e), v(Lg))
        for e in range(4):
            a.valu("v_cvt_pk_bf16_f32", v(vF + e), v(vF + e), v(vF + e))
        a.salu("s_lshr_b32", s(sC), s(sWV), 1)
        a.salu("s_mul_i32", s(sC), s(sC), OT_STR)
        a.salu("s_and_b32", s(sD), s(sWV), 1)
        a.salu("s_lshl_b32", s(sD), s(sD), 7)
        a.salu("s_add_u32", s(sC), s(sC), s(sD))
        a.valu("v_add_u32", v(vT[4]), s(sC), v(vT[4]))
        if has_gu:
            Gg = vG + 16
            bfly_multi("v_add_f32", [Gg + e for e in range(4)], [vG + 20 + e for e in range(4)], ["r8", "p16"])
            for e in range(4):
                rbf(Gg + e)
            for e in range(4):
                a.valu("v_mov_b32", v(vG + 20 + e), v(Gg + e))
            for e in range(4):
                a.valu("v_permlane32_swap_b32", v(Gg + e), v(vG + 20 + e))
            for e in range(4):
                a.valu("v_mul_f32", v(Gg + e), v(Gg + e), v(vG + 20 + e))
            for e in range(4):
                a.valu("v_cvt_pk_bf16_f32", v(Gg + e), v(Gg + e), v(Gg + e))
        a.salu("s_mov_b64", "exec", "0xff")
        a.ds_write("ds_write_b128", v(vT[4]), v(vF, 4), OT_OFF)
        if has_gu:
            a.ds_write("ds_write_b128", v(vT[4]), v(Gg, 4), HT_OFF)
        a.salu("s_mov_b64", "exec", -1)
        a.valu("v_and_b32", v(vT[1]), 15, v(vLane))
        a.valu("v_lshrrev_b32", v(vT[1]), 2, v(vT[1]))
        a.valu("v_mul_u32_u24", v(vT[1]), OT_STR, v(vT[1]))
        a.valu("v_lshrrev_b32", v(vT[2]), 4, v(vLane))
        a.valu("v_lshl_add_u32", v(vT[1]), v(vT[2]), 4, v(vT[1]))
        a.salu("s_lshr_b32", s(sC), s(sWV), 1)
        a.salu("s_lshl_b32", s(sC), s(sC), 6)
        a.valu("v_add_u32", v(vT[1]), s(sC), v(vT[1]))
        a.barrier()
        stamp()
        a.ds_read("ds_read_b128", v(vXD, 4), v(vT[1]), OT_OFF)
        if has_gu:
            a.ds_read("ds_read_b128", v(vXD + 4, 4), v(vT[1]), HT_OFF)
        a.lgkm(0)
        for t in range(8 if has_gu else 4):
            sparseA(vA + 2 * t, vXD + t)
        for t in range(4):
            a.vwait(f"wo{t}")
            gemv_step(vAcc, vA + 2 * t, vWO + 4 * t, t == 0)
        if has_gu:
            for t in range(4):
                a.vwait(f"wd{t}")
                gemv_step(vAcc, vA + 8 + 2 * t, vWD + 4 * t, False)
        a.ds_write("ds_write_b128", v(vRSW), v(vAcc, 4), 0)
        a.ds_write("ds_write_b128", v(vRSW), v(vAcc + 4, 4), 16)
        a.salu("s_and_b32", s(sC), s(sWV), 1)
        a.salu("s_lshl_b32", s(sC), s(sC), 11)
        a.salu("s_lshr_b32", s(sD), s(sWV), 1)
        a.salu("s_lshl_b32", s(sD), s(sD), 9)
        a.salu("s_add_u32", s(sC), s(sC), s(sD))
        a.salu("s_add_u32", s(sC), s(sC), RS_OFF)
        a.valu("v_add_u32", v(vT[3]), s(sC), v(vQ32))
        a.barrier()
        reduce_rs(4, vT[3], 4096, vF)
        tag(vF)
        a.salu("s_mov_b32", "exec_hi", 0)
        a.vstore("fp", "buffer_store_dwordx4", v(vF, 4), v(vQ32), srd(R_WS), s(sFPst), "sc1")
        a.salu("s_mov_b64", "exec", -1)
        stamp()
        Lfin = a.newlabel("Lfin")
        a.salu("s_cmp_eq_u32", s(sWV), 0)
        a.branch("s_cbranch_scc1", Lfin)
        stamp_store()
        a.raw("s_endpgm")
        a.label(Lfin)
        a.valu("v_lshrrev_b32", v(vT[3]), 2, v(vLane))
        a.valu("v_and_b32", v(vT[4]), 3, v(vLane))
        a.valu("v_lshlrev_b32", v(vT[5]), 4, v(vT[4]))
        a.valu("v_lshl_add_u32", v(vT[5]), v(vT[3]), 12, v(vT[5]))
        for i in range(1, 4):
            a.salu("s_add_u32", s(sA + i - 1), s(sFG), i * 65536)
        gather("fg", [(vG, vT[5], sFG, 0), (vG + 4, vT[5], sA, 0), (vG + 8, vT[5], sB, 0), (vG + 12, vT[5], sC, 0)])
        stamp()
        for e in range(4):
            a.valu("v_add_f32", v(vG + e), v(vG + e), v(vG + 4 + e))
            a.valu("v_add_f32", v(vG + 8 + e), v(vG + 8 + e), v(vG + 12 + e))
        for e in range(4):
            a.valu("v_add_f32", v(vG + e), v(vG + e), v(vG + 8 + e))
        bfly_multi("v_add_f32", [vG + e for e in range(4)], [vG + 4 + e for e in range(4)], ["r4", "r8", "p16", "p32"])
        for r in range(2):
            a.valu("v_lshlrev_b32", v(vF + 2 * r), 16, v(vXF + r))
            a.valu("v_and_b32", v(vF + 2 * r + 1), HI16, v(vXF + r))
        for e in range(4):
            a.valu("v_add_f32", v(vG + e), v(vG + e), v(vF + e))
        a.valu("v_cvt_pk_bf16_f32", v(vG + 4), v(vG), v(vG + 1))
        a.valu("v_cvt_pk_bf16_f32", v(vG + 5), v(vG + 2), v(vG + 3))
        a.valu("v_lshlrev_b32", v(vT[4]), 3, v(vT[4]))
        a.salu("s_mov_b64", "exec", "0xf")
        a.vstore("out", "buffer_store_dwordx2", v(vG + 4, 2), v(vT[4]), srd(R_OUT), s(sOutOff))
        if has_gu:
            Lne = a.newlabel("Lne")
            a.salu("s_cmp_lg_u32", "s2", 0)
            a.branch("s_cbranch_scc1", Lne)
            a.salu("s_add_u32", s(sTmp), s(sE), 1)
            a.salu("s_mov_b64", "exec", 1)
            a.valu("v_mov_b32", v(vT[3]), s(sTmp))
            a.vstore("epw", "buffer_store_dword", v(vT[3]), None, srd(R_WS), 0, "sc1")
            a.label(Lne)
        a.salu("s_mov_b64", "exec", -1)
        stamp()
        stamp_store()
        a.raw("s_endpgm")

    rest(True)
    a.label("L_nogu")
    a.vm = list(snap_vm)
    nstamp[0] = snap_stamp
    rest(False)
    a.label("L_end")
    a.raw("s_endpgm")
    return a, va


HEADER = """; Fused decode step: out = x + Attn(LN(x)) + BilinearGLU(LN(x)); one persistent launch, 256 workgroups x 8 waves.
; @launch grid=(256,1,1) block=(512,1,1) lds={lds}
.amdgcn_target "amdgcn-amd-amdhsa--gfx950"
.text
.globl {k}
.p2align 8
.type {k},@function
{k}:
"""
FOOTER = """.section .rodata,"a"
.p2align 6
.amdhsa_kernel {k}
  .amdhsa_next_free_vgpr {nv}
  .amdhsa_next_free_sgpr 102
  .amdhsa_accum_offset {acc}
  .amdhsa_group_segment_fixed_size 0
  .amdhsa_kernarg_size 96
  .amdhsa_user_sgpr_count 2
  .amdhsa_user_sgpr_kernarg_segment_ptr 1
  .amdhsa_system_sgpr_workgroup_id_x 1
.end_amdhsa_kernel
"""


def build(path, cfg):
    a, va = gen(cfg)
    nv = 256
    assert a.maxv <= nv, a.maxv
    txt = HEADER.format(k=KNAME, lds=LDS_BYTES) + a.text() + FOOTER.format(k=KNAME, nv=nv, acc=nv)
    open(path, "w").write(txt)
    return a


if __name__ == "__main__":
    out = sys.argv[1] if len(sys.argv) > 1 else "parallel_sum__sliding_block_cached__glu_gated_bilinear__decode.s"
    cfg = {}
    for kv in sys.argv[2:]:
        k, val = kv.split("=")
        try:
            val = int(val)
        except ValueError:
            pass
        cfg[k] = val
    a = build(out, cfg)
    print("wrote", out, "lines", len(a.lines), "maxv", a.maxv)
```

```python
import sys, os
sys.path.insert(0, os.path.dirname(os.path.abspath(__file__)))
from asmdsl import Asm, VAlloc, v, s

KNAME = "parallel_sum__sliding_block_cached__glu_gated_bilinear__decode_kernel"

EPOCH_OFF = 0
QP_OFF = 0x100000
OP_OFF = 0x200000
ML_OFF = 0x300000
GU_OFF = 0x400000
FP_OFF = 0x500000
ST_OFF = 0x800000
WS_SIZE = 0x10000000

QT_OFF = 0
QT_STR = 272
MLW_OFF = 2176
OT_OFF = 2688
OT_STR = 320
HT_OFF = 3968
PT_OFF = 5376
XN_OFF = 13568
XN_STR = 4160
RS_OFF = 30208
KL_OFF = 46592
LDS_BYTES = 79360

LOG2E = "0x3fb8aa3b"
SCALE = "0x3db504f3"
EPS = "0x3727c5ac"
HI16 = "0xffff0000"
TAGC = (0x11, 0x4a, 0xc7, 0x8e)
RETRY_MAX = 20000

sWV = 3
P_X, P_K, P_V, P_WQ, P_WO, P_BX, P_G, P_U, P_D, P_OUT, P_DBG, P_WS = [4 + 2 * i for i in range(12)]
R_X, R_K, R_V, R_WQ, R_WO, R_GU, R_WD, R_OUT, R_WS = [28 + 4 * i for i in range(9)]
sE = 64
sT = [65, 66, 67, 68]
sT32 = 69
sSelA, sSelB = 70, 71
sSoQ, sSoKV, sSoG, sSoO = 72, 73, 74, 75
sA, sB, sC, sD = 76, 77, 78, 79
sQPst, sQG, sOPst, sMLst, sGUst, sOG, sMLG, sGUG, sFPst, sFG, sOutOff = range(80, 91)
sXq = 91
sFail = 92
sRetry = 94
sXg = 95
sTmp = 96
sTmp2 = 97
sStamp = 98


def gen(cfg):
    a = Asm()
    va = VAlloc(1)
    STAMPS = cfg.get("stamps", False)
    NT = cfg.get("nt", "nt")

    def srd(r):
        return s(r, 4)

    vLane = va.get()
    vM0 = va.get(); vM1 = va.get()
    vFF = va.get()
    vOffQ = va.get(); vOffG = va.get(); vOffO = va.get(); vOffV = va.get()
    vOffK = [va.get() for _ in range(4)]
    vXA = va.get()
    vXG = va.get()
    vRSW = va.get()
    vL16 = va.get()
    vI16 = va.get()
    vQ32 = va.get()
    vStamp = va.get()
    vE = va.get()
    vXF = va.get(2)
    vT = [va.get() for _ in range(8)]
    vWQ = va.get(16)
    vV = va.get(16)
    vGU = va.get(32)
    vWO = va.get(16)
    vWD = va.get(16)
    vG = va.get(32)
    vAcc = va.get(16)
    vAccG = va.get(8)
    vXD = va.get(8)
    vA = va.get(16)
    vF = va.get(16)
    vKf = va.get(16)
    vQf = va.get(16)

    nstamp = [0]

    def stamp():
        if not STAMPS:
            return
        i = nstamp[0]
        nstamp[0] += 1
        a.raw(f"s_memrealtime {s(sStamp, 2)}")
        a.raw("s_waitcnt lgkmcnt(0)")
        a.valu("v_writelane_b32", v(vStamp), s(sStamp), i)

    def stamp_store():
        if not STAMPS:
            return
        a.salu("s_lshl_b32", s(sTmp), "s2", 3)
        a.salu("s_add_u32", s(sTmp), s(sTmp), s(sWV))
        a.salu("s_lshl_b32", s(sTmp), s(sTmp), 7)
        a.salu("s_add_u32", s(sTmp), s(sTmp), ST_OFF)
        a.valu("v_lshlrev_b32", v(vT[0]), 2, v(vLane))
        a.salu("s_mov_b32", "exec_hi", 0)
        a.vstore("stamp", "buffer_store_dword", v(vStamp), v(vT[0]), srd(R_WS), s(sTmp))
        a.salu("s_mov_b64", "exec", -1)

    def bfly(op, x, tmp, kinds):
        for k in kinds:
            if k[0] == "r":
                a.valu(op + "_dpp", v(x), v(x), v(x), mods=f"row_ror:{k[1:]} row_mask:0xf bank_mask:0xf")
            else:
                a.valu("v_mov_b32", v(tmp), v(x))
                a.valu(f"v_permlane{k[1:]}_swap_b32", v(x), v(tmp))
                a.valu(op, v(x), v(x), v(tmp))

    def bfly_multi(op, xs, tmps, kinds):
        for k in kinds:
            if k[0] == "r":
                for x in xs:
                    a.valu(op + "_dpp", v(x), v(x), v(x), mods=f"row_ror:{k[1:]} row_mask:0xf bank_mask:0xf")
            else:
                for x, t in zip(xs, tmps):
                    a.valu("v_mov_b32", v(t), v(x))
                for x, t in zip(xs, tmps):
                    a.valu(f"v_permlane{k[1:]}_swap_b32", v(x), v(t))
                for x, t in zip(xs, tmps):
                    a.valu(op, v(x), v(x), v(t))

    def tag(r):
        for i in range(4):
            a.valu("v_bfi_b32", v(r + i), v(vFF), s(sT[i]), v(r + i))

    def check(r, first):
        a.valu("v_perm_b32", v(vT[0]), v(r + 1), v(r), s(sSelA))
        a.valu("v_perm_b32", v(vT[1]), v(r + 3), v(r + 2), s(sSelB))
        a.valu("v_or_b32", v(vT[0]), v(vT[0]), v(vT[1]))
        if first:
            a.valu("v_cmp_ne_u32", s(sFail, 2), s(sT32), v(vT[0]))
        else:
            a.valu("v_cmp_ne_u32", "vcc", s(sT32), v(vT[0]))
            a.salu("s_or_b64", s(sFail, 2), s(sFail, 2), "vcc")

    def gather(name, loads, after_first=None):
        def issue(tagname):
            for i, (d, vo, so, imm) in enumerate(loads):
                a.vload(f"{tagname}{i}", "buffer_load_dwordx4", v(d, 4), v(vo), srd(R_WS), s(so),
                        (f"offset:{imm} " if imm else "") + "sc1")
        issue(name)
        if after_first:
            after_first()
        a.vwait(f"{name}{len(loads) - 1}")
        Lchk = a.newlabel("Lchk")
        Lok = a.newlabel("Lok")
        a.salu("s_mov_b32", s(sRetry), 0)
        a.label(Lchk)
        for i, (d, vo, so, imm) in enumerate(loads):
            check(d, i == 0)
        a.salu("s_cmp_eq_u64", s(sFail, 2), 0)
        a.branch("s_cbranch_scc1", Lok)
        a.salu("s_add_u32", s(sRetry), s(sRetry), 1)
        a.salu("s_cmp_ge_u32", s(sRetry), RETRY_MAX)
        a.branch("s_cbranch_scc1", Lok)
        snap = list(a.vm)
        issue(name + "r")
        a.vwait_all()
        a.vm = snap
        a.branch("s_branch", Lchk)
        a.label(Lok)

    def sparseA(dst, xd):
        a.valu("v_and_b32", v(dst), v(xd), v(vM0))
        a.valu("v_and_b32", v(dst + 1), v(xd), v(vM1))

    def gemv_step(acc, areg, wreg, first):
        c0 = "0" if first else v(acc, 4)
        c1 = "0" if first else v(acc + 4, 4)
        a.mfma("v_mfma_f32_16x16x16_bf16", v(acc, 4), v(areg, 2), v(wreg, 2), c0)
        a.mfma("v_mfma_f32_16x16x16_bf16", v(acc + 4, 4), v(areg, 2), v(wreg + 2, 2), c1)

    def stream(name, dst, voff, rs, sbase, add):
        if add == 0:
            so = s(sbase)
        else:
            a.salu("s_add_u32", s(sTmp), s(sbase), add)
            so = s(sTmp)
        a.vload(name, "buffer_load_dwordx4", v(dst, 4), v(voff), srd(rs), so, NT)

    def reduce_rs(nparts, addr_reg, part_stride, out):
        for p in range(nparts):
            a.ds_read("ds_read_b128", v(vG + 4 * p, 4), v(addr_reg), p * part_stride)
        a.lgkm(0)
        n = nparts
        cur = [vG + 4 * p for p in range(nparts)]
        while len(cur) > 1:
            nxt = []
            for i in range(0, len(cur), 2):
                dst = out if len(cur) == 2 else cur[i]
                for e in range(4):
                    a.valu("v_add_f32", v(dst + e), v(cur[i] + e), v(cur[i + 1] + e))
                nxt.append(dst)
            cur = nxt

    a.salu("s_cmp_ge_u32", "s2", 256)
    a.branch("s_cbranch_scc1", "L_end")
    if STAMPS:
        a.valu("v_mov_b32", v(vStamp), 0)
    stamp()
    if cfg.get("pfcode", 1):
        a.raw("s_getpc_b64 s[96:97]")
        a.lines.append("L_pc:")
        a.raw(f"s_sub_u32 s96, s96, L_pc-{KNAME}")
        a.raw("s_subb_u32 s97, s97, 0")
        a.valu("v_lshlrev_b32", v(vT[7]), 4, "v0")
        for i in range(cfg.get("pfcode", 1)):
            if i:
                a.valu("v_add_u32", v(vT[7]), "0x2000", v(vT[7]))
            a.valu("v_min_u32", v(vT[6]), f"L_codeend-{KNAME}-16", v(vT[7]))
            a._issue(f"global_load_dwordx4 {v(vQf + 4 * i, 4)}, {v(vT[6])}, s[96:97]", __import__("asmdsl").Rec("vld", set(), set()))
            a.vm.append(f"pf{i}")
    a.raw("s_load_dwordx16 s[4:19], s[0:1], 0")
    a.raw("s_load_dwordx8 s[20:27], s[0:1], 64")
    a.valu("v_lshrrev_b32", v(vT[0]), 6, "v0")
    a.valu("v_and_b32", v(vLane), 63, "v0")
    a.valu("v_readfirstlane_b32", s(sWV), v(vT[0]))
    vJ, vS = vT[1], vT[2]
    a.valu("v_and_b32", v(vJ), 15, v(vLane))
    a.valu("v_lshrrev_b32", v(vS), 4, v(vLane))
    a.valu("v_lshlrev_b32", v(vI16), 4, v(vJ))
    a.valu("v_lshlrev_b32", v(vL16), 4, v(vLane))
    a.valu("v_lshlrev_b32", v(vT[3]), 5, v(vLane))
    a.valu("v_lshl_add_u32", v(vOffQ), v(vS), 15, v(vI16))
    a.salu("s_lshr_b32", s(sA), "s2", 5)
    a.salu("s_lshl_b32", s(sA), s(sA), 7)
    a.salu("s_lshl_b32", s(sB), s(sWV), 4)
    a.salu("s_add_u32", s(sA), s(sA), s(sB))
    a.salu("s_lshl_b32", s(sXq), s(sA), 2)
    a.salu("s_lshl_b32", s(sSoQ), s(sA), 13)
    a.salu("s_and_b32", s(sB), "s2", 31)
    a.salu("s_lshl_b32", s(sB), s(sB), 8)
    a.salu("s_add_u32", s(sSoQ), s(sSoQ), s(sB))
    a.salu("s_and_b32", s(sC), s(sWV), 3)
    a.salu("s_lshl_b32", s(sC), s(sC), 11)
    a.raw("s_waitcnt lgkmcnt(0)")
    def mk(r, p, size):
        a.salu("s_mov_b32", s(r), s(p))
        a.salu("s_mov_b32", s(r + 1), s(p + 1))
        a.salu("s_mov_b32", s(r + 2), size)
        a.salu("s_mov_b32", s(r + 3), "0x00020000")
    mk(R_X, P_X, 8192)
    vX = vG
    a.vload("x0", "buffer_load_dwordx4", v(vX, 4), v(vT[3]), srd(R_X), s(sC))
    a.vload("x1", "buffer_load_dwordx4", v(vX + 4, 4), v(vT[3]), srd(R_X), s(sC), "offset:16")
    mk(R_WQ, P_WQ, 8388608)
    for t in range(4):
        stream(f"wq{t}", vWQ + 4 * t, vOffQ, R_WQ, sSoQ, t * 8192)
    mk(R_WS, P_WS, WS_SIZE)
    a.vload("ep", "buffer_load_dword", v(vE), None, srd(R_WS), 0, "sc1")
    a.salu("s_and_b32", s(sA), "s2", 7)
    a.salu("s_lshr_b32", s(sB), "s2", 7)
    a.salu("s_lshl_b32", s(sB), s(sB), 3)
    a.salu("s_add_u32", s(sA), s(sA), s(sB))
    a.salu("s_lshr_b32", s(sB), "s2", 3)
    a.salu("s_and_b32", s(sB), s(sB), 15)
    a.salu("s_lshl_b32", s(sSoKV), s(sA), 13)
    a.salu("s_lshl_b32", s(sC), s(sB), 7)
    a.salu("s_add_u32", s(sSoKV), s(sSoKV), s(sC))
    a.salu("s_lshl_b32", s(sC), s(sWV), 4)
    a.salu("s_add_u32", s(sSoKV), s(sSoKV), s(sC))
    a.salu("s_add_u32", s(sSoKV), s(sSoKV), 6144)
    a.salu("s_lshl_b32", s(sSoKV), s(sSoKV), 8)
    a.valu("v_xor_b32", v(vT[4]), v(vJ), v(vS))
    a.valu("v_lshlrev_b32", v(vT[4]), 4, v(vT[4]))
    a.valu("v_lshl_add_u32", v(vOffK[0]), v(vS), 8, v(vT[4]))
    for t in range(1, 4):
        a.valu("v_xor_b32", v(vOffK[t]), 64 * t if t == 1 else hex(64 * t), v(vOffK[0]))
    mk(R_K, P_K, 33554432)
    a.salu("s_lshl_b32", s(sC), s(sWV), 12)
    a.salu("s_add_u32", s(sC), s(sC), KL_OFF)
    a.salu("s_mov_b32", "m0", s(sC))
    for t in range(4):
        a.vload_lds(f"k{t}", "buffer_load_dwordx4", v(vOffK[t]), srd(R_K), s(sSoKV),
                    (f"offset:{1024 * t} " if t else "") + NT)
    a.salu("s_lshl_b32", s(sC), s(sA), 3)
    a.salu("s_add_u32", s(sC), s(sC), s(sWV))
    a.salu("s_lshl_b32", s(sQG), s(sC), 12)
    a.salu("s_add_u32", s(sQG), s(sQG), QP_OFF)
    a.salu("s_and_b32", s(sC), s(sA), 3)
    a.salu("s_lshl_b32", s(sC), s(sC), 3)
    a.salu("s_add_u32", s(sC), s(sC), s(sWV))
    a.salu("s_lshr_b32", s(sD), s(sA), 2)
    a.salu("s_lshl_b32", s(sOPst), s(sC), 15)
    a.salu("s_lshl_b32", s(sTmp), s(sD), 12)
    a.salu("s_add_u32", s(sOPst), s(sOPst), s(sTmp))
    a.salu("s_lshl_b32", s(sTmp), s(sB), 8)
    a.salu("s_add_u32", s(sOPst), s(sOPst), s(sTmp))
    a.salu("s_add_u32", s(sOPst), s(sOPst), OP_OFF)
    a.salu("s_lshl_b32", s(sMLst), s(sC), 2)
    a.salu("s_add_u32", s(sMLst), s(sMLst), s(sD))
    a.salu("s_lshl_b32", s(sMLst), s(sMLst), 4)
    a.salu("s_add_u32", s(sMLst), s(sMLst), s(sB))
    a.salu("s_lshl_b32", s(sMLst), s(sMLst), 4)
    a.salu("s_add_u32", s(sMLst), s(sMLst), ML_OFF)
    a.salu("s_lshr_b32", s(sA), s(sWV), 1)
    a.salu("s_and_b32", s(sB), s(sWV), 1)
    a.salu("s_lshl_b32", s(sC), s(sA), 5)
    a.salu("s_and_b32", s(sD), "s2", 31)
    a.salu("s_add_u32", s(sC), s(sC), s(sD))
    a.salu("s_lshl_b32", s(sC), s(sC), 3)
    a.salu("s_lshr_b32", s(sD), "s2", 5)
    a.salu("s_add_u32", s(sC), s(sC), s(sD))
    a.salu("s_lshl_b32", s(sQPst), s(sC), 9)
    a.salu("s_lshl_b32", s(sD), s(sB), 8)
    a.salu("s_add_u32", s(sQPst), s(sQPst), s(sD))
    a.salu("s_add_u32", s(sQPst), s(sQPst), QP_OFF)
    a.salu("s_and_b32", s(sC), "s2", 7)
    a.salu("s_lshr_b32", s(sD), "s2", 5)
    a.salu("s_lshl_b32", s(sD), s(sD), 3)
    a.salu("s_add_u32", s(sC), s(sC), s(sD))
    a.salu("s_lshr_b32", s(sD), "s2", 3)
    a.salu("s_and_b32", s(sD), s(sD), 3)
    a.salu("s_lshl_b32", s(sSoO), s(sC), 17)
    a.salu("s_lshl_b32", s(sTmp), s(sA), 15)
    a.salu("s_add_u32", s(sSoO), s(sSoO), s(sTmp))
    a.salu("s_lshl_b32", s(sTmp), s(sD), 9)
    a.salu("s_add_u32", s(sSoO), s(sSoO), s(sTmp))
    a.salu("s_lshl_b32", s(sTmp), s(sB), 8)
    a.salu("s_add_u32", s(sSoO), s(sSoO), s(sTmp))
    a.salu("s_lshl_b32", s(sOG), s(sC), 14)
    a.salu("s_lshl_b32", s(sTmp), s(sA), 12)
    a.salu("s_add_u32", s(sOG), s(sOG), s(sTmp))
    a.salu("s_lshl_b32", s(sTmp), s(sB), 7)
    a.salu("s_add_u32", s(sOG), s(sOG), s(sTmp))
    a.salu("s_add_u32", s(sOG), s(sOG), OP_OFF)
    a.salu("s_lshr_b32", s(sMLG), s(sC), 1)
    a.salu("s_lshl_b32", s(sMLG), s(sMLG), 2)
    a.salu("s_add_u32", s(sMLG), s(sMLG), s(sA))
    a.salu("s_lshl_b32", s(sMLG), s(sMLG), 8)
    a.salu("s_add_u32", s(sMLG), s(sMLG), ML_OFF)
    a.salu("s_lshl_b32", s(sGUG), s(sC), 2)
    a.salu("s_add_u32", s(sGUG), s(sGUG), s(sA))
    a.salu("s_lshl_b32", s(sGUG), s(sGUG), 11)
    a.salu("s_add_u32", s(sGUG), s(sGUG), s(sTmp))
    a.salu("s_add_u32", s(sGUG), s(sGUG), GU_OFF)
    a.salu("s_lshl_b32", s(sFPst), s(sD), 6)
    a.salu("s_add_u32", s(sFPst), s(sFPst), s(sC))
    a.salu("s_lshl_b32", s(sFPst), s(sFPst), 2)
    a.salu("s_add_u32", s(sFPst), s(sFPst), s(sA))
    a.salu("s_lshl_b32", s(sFPst), s(sFPst), 10)
    a.salu("s_lshl_b32", s(sTmp), s(sB), 9)
    a.salu("s_add_u32", s(sFPst), s(sFPst), s(sTmp))
    a.salu("s_add_u32", s(sFPst), s(sFPst), FP_OFF)
    a.salu("s_lshr_b32", s(sC), "s2", 2)
    a.salu("s_cmp_ge_u32", s(sC), 28)
    a.salu("s_cselect_b32", s(sD), 1, 0)
    a.salu("s_cselect_b32", s(R_GU), s(P_U), s(P_G))
    a.salu("s_cselect_b32", s(R_GU + 1), s(P_U + 1), s(P_G + 1))
    a.salu("s_mov_b32", s(R_GU + 2), 7340032)
    a.salu("s_mov_b32", s(R_GU + 3), "0x00020000")
    a.salu("s_mul_i32", s(sTmp), s(sD), 28)
    a.salu("s_sub_u32", s(sC), s(sC), s(sTmp))
    a.salu("s_and_b32", s(sTmp), "s2", 3)
    a.salu("s_lshl_b32", s(sTmp2), s(sTmp), 8)
    a.salu("s_lshl_b32", s(sXg), s(sWV), 5)
    a.salu("s_add_u32", s(sTmp2), s(sTmp2), s(sXg))
    a.salu("s_lshl_b32", s(sXg), s(sTmp2), 2)
    a.salu("s_mul_i32", s(sSoG), s(sTmp2), 7168)
    a.salu("s_lshl_b32", s(sTmp2), s(sC), 8)
    a.salu("s_add_u32", s(sSoG), s(sSoG), s(sTmp2))
    a.salu("s_lshl_b32", s(sGUst), s(sC), 1)
    a.salu("s_add_u32", s(sGUst), s(sGUst), s(sB))
    a.salu("s_lshl_b32", s(sGUst), s(sGUst), 2)
    a.salu("s_add_u32", s(sGUst), s(sGUst), s(sA))
    a.salu("s_lshl_b32", s(sGUst), s(sGUst), 1)
    a.salu("s_add_u32", s(sGUst), s(sGUst), s(sD))
    a.salu("s_lshl_b32", s(sGUst), s(sGUst), 2)
    a.salu("s_add_u32", s(sGUst), s(sGUst), s(sTmp))
    a.salu("s_lshl_b32", s(sGUst), s(sGUst), 8)
    a.salu("s_add_u32", s(sGUst), s(sGUst), GU_OFF)
    a.salu("s_lshr_b32", s(sC), "s2", 6)
    a.salu("s_and_b32", s(sD), "s2", 63)
    a.salu("s_lshl_b32", s(sOutOff), s(sC), 11)
    a.salu("s_lshl_b32", s(sTmp), s(sD), 5)
    a.salu("s_add_u32", s(sOutOff), s(sOutOff), s(sTmp))
    a.salu("s_lshr_b32", s(sTmp), s(sD), 4)
    a.salu("s_lshl_b32", s(sFG), s(sTmp), 18)
    a.salu("s_lshl_b32", s(sTmp), s(sC), 10)
    a.salu("s_add_u32", s(sFG), s(sFG), s(sTmp))
    a.salu("s_and_b32", s(sTmp), s(sD), 15)
    a.salu("s_lshl_b32", s(sTmp), s(sTmp), 6)
    a.salu("s_add_u32", s(sFG), s(sFG), s(sTmp))
    a.salu("s_add_u32", s(sFG), s(sFG), FP_OFF)
    a.valu("v_and_b32", v(vT[4]), 3, v(vLane))
    a.valu("v_lshlrev_b32", v(vT[5]), 3, v(vT[4]))
    a.vload("xf", "buffer_load_dwordx2", v(vXF, 2), v(vT[5]), srd(R_X), s(sOutOff))
    mk(R_V, P_V, 33554432)
    mk(R_WO, P_WO, 8388608)
    mk(R_WD, P_D, 7340032)
    mk(R_OUT, P_OUT, 8192)
    a.salu("s_mov_b32", s(sSelA), "0x0c0c0400")
    a.salu("s_mov_b32", s(sSelB), "0x04000c0c")
    a.valu("v_mov_b32", v(vFF), "0xff")
    a.valu("v_and_b32", v(vT[5]), 1, v(vLane))
    a.valu("v_lshlrev_b32", v(vT[5]), 4, v(vT[5]))
    a.valu("v_mov_b32", v(vT[6]), "0xffff")
    a.valu("v_lshlrev_b32", v(vT[6]), v(vT[5]), v(vT[6]))
    a.valu("v_cmp_gt_u32", "vcc", 2, v(vT[4]))
    a.valu("v_cndmask_b32", v(vM0), 0, v(vT[6]), "vcc")
    a.valu("v_cndmask_b32", v(vM1), v(vT[6]), 0, "vcc")
    a.valu("v_mul_u32_u24", v(vOffG), "0xe000", v(vS))
    a.valu("v_add_u32", v(vOffG), v(vOffG), v(vI16))
    a.valu("v_lshl_add_u32", v(vOffO), v(vS), 13, v(vI16))
    a.valu("v_lshl_add_u32", v(vOffV), v(vS), 10, v(vI16))
    a.valu("v_lshrrev_b32", v(vT[4]), 2, v(vJ))
    a.valu("v_mul_u32_u24", v(vT[5]), XN_STR, v(vT[4]))
    a.valu("v_lshl_add_u32", v(vXA), v(vS), 4, v(vT[5]))
    a.valu("v_add_u32", v(vXA), s(sXq), v(vXA))
    a.valu("v_lshl_add_u32", v(vXG), v(vS), 5, v(vT[5]))
    a.valu("v_add_u32", v(vXG), s(sXg), v(vXG))
    a.salu("s_lshl_b32", s(sC), s(sWV), 11)
    a.salu("s_add_u32", s(sC), s(sC), RS_OFF)
    a.valu("v_lshlrev_b32", v(vT[5]), 5, v(vJ))
    a.valu("v_lshl_add_u32", v(vRSW), v(vS), 9, v(vT[5]))
    a.valu("v_add_u32", v(vRSW), s(sC), v(vRSW))
    a.valu("v_and_b32", v(vQ32), 31, v(vLane))
    a.valu("v_lshlrev_b32", v(vQ32), 4, v(vQ32))

    a.vwait("x1")
    stamp()
    F = vA
    for i in range(8):
        a.valu("v_lshlrev_b32", v(F + 2 * i), 16, v(vX + i))
        a.valu("v_and_b32", v(F + 2 * i + 1), HI16, v(vX + i))
    S_ = vF
    for i in range(8):
        a.valu("v_add_f32", v(S_ + i), v(F + 2 * i), v(F + 2 * i + 1))
    for w_ in (4, 2, 1):
        for i in range(w_):
            a.valu("v_add_f32", v(S_ + i), v(S_ + i), v(S_ + i + w_))
    ALL = ["r8", "r4", "r2", "r1", "p16", "p32"]
    bfly("v_add_f32", S_, S_ + 1, ALL)
    vMean = vF + 2
    a.valu("v_mul_f32", v(vMean), "0x3a800000", v(S_))
    Dv = vKf
    for i in range(16):
        a.valu("v_sub_f32", v(Dv + i), v(F + i), v(vMean))
    Q0, Q1 = vF + 4, vF + 5
    a.valu("v_mul_f32", v(Q0), v(Dv), v(Dv))
    a.valu("v_mul_f32", v(Q1), v(Dv + 1), v(Dv + 1))
    for i in range(2, 16, 2):
        a.valu("v_fmac_f32", v(Q0), v(Dv + i), v(Dv + i))
        a.valu("v_fmac_f32", v(Q1), v(Dv + i + 1), v(Dv + i + 1))
    a.valu("v_add_f32", v(Q0), v(Q0), v(Q1))
    bfly("v_add_f32", Q0, Q1, ALL)
    a.valu("v_mul_f32", v(Q0), "0x3a800000", v(Q0))
    def rbf(x):
        a.valu("v_cvt_pk_bf16_f32", v(x), v(x), v(x))
        a.valu("v_and_b32", v(x), HI16, v(x))
    rbf(vMean)
    rbf(Q0)
    a.valu("v_add_f32", v(Q0), EPS, v(Q0))
    rbf(Q0)
    a.valu("v_sqrt_f32", v(Q0), v(Q0))
    rbf(Q0)
    a.valu("v_rcp_f32", v(Q1), v(Q0))
    Lh = a.newlabel("Lhalf")
    a.salu("s_cmp_lt_u32", s(sWV), 4)
    a.branch("s_cbranch_scc1", Lh)
    for i in range(8):
        a.valu("v_mov_b32", v(F + i), v(F + 8 + i))
    a.label(Lh)
    for i in range(8):
        a.valu("v_sub_f32", v(F + i), v(F + i), v(vMean))
    for i in range(8):
        rbf(F + i)
    for i in range(8):
        a.valu("v_mul_f32", v(Dv + i), v(F + i), v(Q1))
    for i in range(8):
        a.valu("v_fma_f32", v(F + i), "-" + v(Dv + i), v(Q0), v(F + i))
    for i in range(8):
        a.valu("v_fmac_f32", v(Dv + i), v(F + i), v(Q1))
    for i in range(8):
        a.valu("v_cvt_pk_bf16_f32", v(Dv + i), v(Dv + i), v(Dv + i))
    a.salu("s_and_b32", s(sC), s(sWV), 3)
    a.salu("s_mul_i32", s(sC), s(sC), XN_STR)
    a.salu("s_lshr_b32", s(sD), s(sWV), 2)
    a.salu("s_lshl_b32", s(sD), s(sD), 5)
    a.salu("s_add_u32", s(sC), s(sC), s(sD))
    a.valu("v_lshlrev_b32", v(vT[0]), 6, v(vLane))
    a.valu("v_add_u32", v(vT[0]), s(sC), v(vT[0]))
    a.ds_write("ds_write_b128", v(vT[0]), v(Dv, 4), XN_OFF)
    a.ds_write("ds_write_b128", v(vT[0]), v(Dv + 4, 4), XN_OFF + 16)
    a.barrier()
    stamp()

    a.ds_read("ds_read_b128", v(vXD, 4), v(vXA), XN_OFF)
    a.lgkm(0)
    for t in range(4):
        sparseA(vA + 2 * t, vXD + t)
    for t in range(4):
        a.vwait(f"wq{t}")
        gemv_step(vAcc, vA + 2 * t, vWQ + 4 * t, t == 0)
    for t in range(4):
        a.vload(f"v{t}", "buffer_load_dwordx4", v(vV + 4 * t, 4), v(vOffV), srd(R_V), s(sSoKV),
                (f"offset:{256 * t} " if t else "") + NT)
    a.vwait("ep")
    a.valu("v_readfirstlane_b32", s(sE), v(vE))
    for i in range(4):
        a.salu("s_add_u32", s(sT[i]), s(sE), TAGC[i])
        a.salu("s_and_b32", s(sT[i]), s(sT[i]), "0xff")
    a.salu("s_lshl_b32", s(sTmp), s(sT[1]), 8)
    a.salu("s_or_b32", s(sT32), s(sT[0]), s(sTmp))
    a.salu("s_lshl_b32", s(sTmp), s(sT[2]), 16)
    a.salu("s_or_b32", s(sT32), s(sT32), s(sTmp))
    a.salu("s_lshl_b32", s(sTmp), s(sT[3]), 24)
    a.salu("s_or_b32", s(sT32), s(sT32), s(sTmp))
    a.ds_write("ds_write_b128", v(vRSW), v(vAcc, 4), 0)
    a.ds_write("ds_write_b128", v(vRSW), v(vAcc + 4, 4), 16)
    a.barrier()
    stamp()
    a.salu("s_lshl_b32", s(sC), s(sWV), 8)
    a.salu("s_add_u32", s(sC), s(sC), RS_OFF)
    vRD16 = vT[7]
    a.valu("v_add_u32", v(vRD16), s(sC), v(vI16))
    reduce_rs(8, vRD16, 2048, vF)
    tag(vF)
    a.salu("s_mov_b64", "exec", "0xffff")
    a.vstore("qp", "buffer_store_dwordx4", v(vF, 4), v(vI16), srd(R_WS), s(sQPst), "sc1")
    a.salu("s_mov_b64", "exec", -1)
    stamp()

    a.salu("s_cmp_ge_u32", "s2", 224)
    a.branch("s_cbranch_scc1", "L_nogu")
    snap_vm = list(a.vm)
    snap_stamp = nstamp[0]

    def rest(has_gu):
        def gu_load(t):
            stream(f"gu{t}", vGU + 4 * t, vOffG, R_GU, sSoG, t * 7168)

        def gu_mfma(t):
            a.vwait(f"gu{t}")
            gemv_step(vAccG, vA + 2 * t, vGU + 4 * t, t == 0)

        def wo_load(t):
            stream(f"wo{t}", vWO + 4 * t, vOffO, R_WO, sSoO, t * 2048)

        def wd_load(t):
            stream(f"wd{t}", vWD + 4 * t, vOffO, R_WD, sSoO, t * 2048)

        vAG = vWQ
        if has_gu:
            for t in range(4):
                gu_load(t)
            a.ds_read("ds_read_b128", v(vXD, 4), v(vXG), XN_OFF)
            a.ds_read("ds_read_b128", v(vXD + 4, 4), v(vXG), XN_OFF + 16)
            a.lgkm(0)
            for t in range(8):
                sparseA(vAG + 2 * t, vXD + t)

            def gu_mfma(t):
                a.vwait(f"gu{t}")
                gemv_step(vAccG, vAG + 2 * t, vGU + 4 * t, t == 0)
            for t in range(cfg.get("gu_before_qg", 2)):
                gu_mfma(t)
        else:
            a.vwait("v3")
        stamp()

        def after_qg():
            if has_gu:
                for t in range(4, 8):
                    gu_load(t)
                for t in range(cfg.get("gu_before_qg", 2), 4):
                    gu_mfma(t)
            else:
                for t in range(4):
                    wo_load(t)
        gather("qg", [(vG + 4 * u, vL16, sQG, 1024 * u) for u in range(4)], after_qg)
        stamp()
        for e in range(4):
            a.valu("v_add_f32", v(vG + e), v(vG + e), v(vG + 4 + e))
            a.valu("v_add_f32", v(vG + 8 + e), v(vG + 8 + e), v(vG + 12 + e))
        for e in range(4):
            a.valu("v_add_f32", v(vG + e), v(vG + e), v(vG + 8 + e))
        bfly_multi("v_add_f32", [vG + e for e in range(4)], [vG + 4 + e for e in range(4)], ["p32"])
        a.valu("v_cvt_pk_bf16_f32", v(vG + 4), v(vG), v(vG + 1))
        a.valu("v_cvt_pk_bf16_f32", v(vG + 5), v(vG + 2), v(vG + 3))
        a.salu("s_mul_i32", s(sC), s(sWV), QT_STR)
        a.salu("s_add_u32", s(sC), s(sC), QT_OFF)
        a.valu("v_lshrrev_b32", v(vT[0]), 1, v(vQ32))
        a.valu("v_add_u32", v(vT[0]), s(sC), v(vT[0]))
        a.ds_write("ds_write_b64", v(vT[0]), v(vG + 4, 2), 0)
        if has_gu:
            for t in range(4):
                wo_load(t)
        a.valu("v_and_b32", v(vT[1]), 15, v(vLane))
        a.valu("v_lshrrev_b32", v(vT[2]), 4, v(vLane))
        a.valu("v_xor_b32", v(vT[3]), v(vT[1]), v(vT[2]))
        a.valu("v_lshlrev_b32", v(vT[3]), 4, v(vT[3]))
        a.valu("v_lshl_add_u32", v(vT[3]), v(vT[1]), 8, v(vT[3]))
        a.salu("s_lshl_b32", s(sD), s(sWV), 12)
        a.salu("s_add_u32", s(sD), s(sD), KL_OFF)
        a.valu("v_add_u32", v(vT[3]), s(sD), v(vT[3]))
        a.ds_read("ds_read_b128", v(vKf, 4), v(vT[3]), 0)
        for c in range(1, 4):
            a.valu("v_xor_b32", v(vT[4]), 64 * c if c == 1 else hex(64 * c), v(vT[3]))
            a.ds_read("ds_read_b128", v(vKf + 4 * c, 4), v(vT[4]), 0)
        a.valu("v_and_b32", v(vT[4]), 7, v(vLane))
        a.valu("v_mul_u32_u24", v(vT[4]), QT_STR, v(vT[4]))
        a.valu("v_lshl_add_u32", v(vT[4]), v(vT[2]), 4, v(vT[4]))
        a.barrier()
        stamp()
        for c in range(4):
            a.ds_read("ds_read_b128", v(vQf + 4 * c, 4), v(vT[4]), QT_OFF + 64 * c)
        Sx = vF
        for c in range(4):
            a.lgkm(3 - c)
            a.mfma("v_mfma_f32_16x16x32_bf16", v(Sx, 4), v(vKf + 4 * c, 4), v(vQf + 4 * c, 4),
                   "0" if c == 0 else v(Sx, 4))
        Z = vF + 4
        a.valu("v_cvt_pk_bf16_f32", v(vF + 8), v(Sx), v(Sx + 1))
        a.valu("v_cvt_pk_bf16_f32", v(vF + 9), v(Sx + 2), v(Sx + 3))
        for r in range(2):
            a.valu("v_lshlrev_b32", v(Z + 2 * r), 16, v(vF + 8 + r))
            a.valu("v_and_b32", v(Z + 2 * r + 1), HI16, v(vF + 8 + r))
        for r in range(4):
            a.valu("v_mul_f32", v(Z + r), SCALE, v(Z + r))
        a.valu("v_cvt_pk_bf16_f32", v(vF + 8), v(Z), v(Z + 1))
        a.valu("v_cvt_pk_bf16_f32", v(vF + 9), v(Z + 2), v(Z + 3))
        for r in range(2):
            a.valu("v_lshlrev_b32", v(Z + 2 * r), 16, v(vF + 8 + r))
            a.valu("v_and_b32", v(Z + 2 * r + 1), HI16, v(vF + 8 + r))
        MX, LS = vF + 10, vF + 11
        a.valu("v_max3_f32", v(MX), v(Z), v(Z + 1), v(Z + 2))
        a.valu("v_max_f32", v(MX), v(MX), v(Z + 3))
        bfly("v_max_f32", MX, vF + 12, ["p16", "p32"])
        for r in range(4):
            a.valu("v_sub_f32", v(Z + r), v(Z + r), v(MX))
        for r in range(4):
            a.valu("v_mul_f32", v(Z + r), LOG2E, v(Z + r))
        for r in range(4):
            a.valu("v_exp_f32", v(Z + r), v(Z + r))
        a.valu("v_add_f32", v(LS), v(Z), v(Z + 1))
        a.valu("v_add_f32", v(vF + 12), v(Z + 2), v(Z + 3))
        for r in range(4):
            a.valu("v_cvt_pk_bf16_f32", v(Sx + r), v(Z + r), v(Z + r))
        a.valu("v_add_f32", v(LS), v(LS), v(vF + 12))
        a.salu("s_lshl_b32", s(sC), s(sWV), 10)
        a.salu("s_add_u32", s(sC), s(sC), PT_OFF)
        a.valu("v_lshlrev_b32", v(vT[3]), 6, v(vT[1]))
        a.valu("v_lshl_add_u32", v(vT[3]), v(vT[2]), 4, v(vT[3]))
        a.valu("v_add_u32", v(vT[3]), s(sC), v(vT[3]))
        a.ds_write("ds_write_b128", v(vT[3]), v(Sx, 4), 0)
        a.valu("v_lshrrev_b32", v(vT[4]), 2, v(vT[1]))
        a.valu("v_lshlrev_b32", v(vT[4]), 6, v(vT[4]))
        a.valu("v_lshl_add_u32", v(vT[4]), v(vT[2]), 4, v(vT[4]))
        a.valu("v_add_u32", v(vT[4]), s(sC), v(vT[4]))
        a.ds_read("ds_read_b128", v(vXD, 4), v(vT[4]), 0)
        a.ds_read("ds_read_b128", v(vXD + 4, 4), v(vT[4]), 256)
        bfly("v_add_f32", LS, vF + 12, ["p16", "p32"])
        a.salu("s_lshl_b32", s(sC), s(sWV), 3)
        a.salu("s_add_u32", s(sC), s(sC), MLW_OFF)
        a.valu("v_lshlrev_b32", v(vT[3]), 6, v(vT[1]))
        a.valu("v_add_u32", v(vT[3]), s(sC), v(vT[3]))
        a.salu("s_mov_b64", "exec", "0xff")
        a.ds_write("ds_write_b64", v(vT[3]), v(MX, 2), 0)
        a.salu("s_mov_b64", "exec", -1)
        a.lgkm(0)
        for i in range(8):
            sparseA(vA + 2 * i, vXD + i)
        for t in range(4):
            for hg in range(2):
                gemv_step(vAcc + 8 * hg, vA + 2 * (4 * hg + t), vV + 4 * t, t == 0)
        a.valu("v_lshlrev_b32", v(vT[3]), 5, v(vT[1]))
        a.valu("v_lshl_add_u32", v(vT[3]), v(vT[2]), 9, v(vT[3]))
        a.valu("v_add_u32", v(vT[3]), s(sD), v(vT[3]))
        for hg in range(2):
            for hf in range(2):
                a.ds_write("ds_write_b128", v(vT[3]), v(vAcc + 8 * hg + 4 * hf, 4), hg * 2048 + hf * 16)
        a.barrier()
        stamp()
        a.salu("s_lshl_b32", s(sC), s(sWV), 6)
        a.salu("s_add_u32", s(sC), s(sC), MLW_OFF)
        a.valu("v_mov_b32", v(vT[3]), s(sC))
        MLr = vKf
        for i in range(4):
            a.ds_read("ds_read_b128", v(MLr + 4 * i, 4), v(vT[3]), 16 * i)
        a.salu("s_lshl_b32", s(sC), s(sWV), 9)
        a.salu("s_add_u32", s(sC), s(sC), KL_OFF)
        a.valu("v_add_u32", v(vT[4]), s(sC), v(vQ32))
        for p in range(8):
            a.ds_read("ds_read_b128", v(vG + 4 * p, 4), v(vT[4]), p * 4096)
        a.lgkm(8)
        Mx = vF + 4
        a.valu("v_max3_f32", v(Mx), v(MLr), v(MLr + 2), v(MLr + 4))
        a.valu("v_max3_f32", v(Mx), v(Mx), v(MLr + 6), v(MLr + 8))
        a.valu("v_max3_f32", v(Mx), v(Mx), v(MLr + 10), v(MLr + 12))
        a.valu("v_max_f32", v(Mx), v(Mx), v(MLr + 14))
        for p in range(8):
            a.valu("v_sub_f32", v(MLr + 2 * p), v(MLr + 2 * p), v(Mx))
        for p in range(8):
            a.valu("v_mul_f32", v(MLr + 2 * p), LOG2E, v(MLr + 2 * p))
        for p in range(8):
            a.valu("v_exp_f32", v(MLr + 2 * p), v(MLr + 2 * p))
        Lx = vF + 5
        a.valu("v_mul_f32", v(Lx), v(MLr), v(MLr + 1))
        for p in range(1, 8):
            a.valu("v_fmac_f32", v(Lx), v(MLr + 2 * p), v(MLr + 2 * p + 1))
        a.lgkm(0)
        for e in range(4):
            a.valu("v_mul_f32", v(vF + e), v(MLr), v(vG + e))
        for p in range(1, 8):
            for e in range(4):
                a.valu("v_fmac_f32", v(vF + e), v(MLr + 2 * p), v(vG + 4 * p + e))
        tag(vF)
        a.valu("v_and_b32", v(vT[3]), 16, v(vLane))
        a.valu("v_lshl_add_u32", v(vT[3]), v(vT[3]), 10, v(vI16))
        a.valu("v_mov_b32", v(vF + 6), 0)
        a.valu("v_mov_b32", v(vF + 7), 0)
        tag(vF + 4)
        a.salu("s_mov_b32", "exec_hi", 0)
        a.vstore("op", "buffer_store_dwordx4", v(vF, 4), v(vT[3]), srd(R_WS), s(sOPst), "sc1")
        a.salu("s_mov_b64", "exec", 1)
        a.vstore("ml", "buffer_store_dwordx4", v(vF + 4, 4), None, srd(R_WS), s(sMLst), "sc1")
        a.salu("s_mov_b64", "exec", -1)
        stamp()

        if has_gu:
            for t in range(4, 8):
                gu_mfma(t)
            for t in range(4):
                wd_load(t)
            a.ds_write("ds_write_b128", v(vRSW), v(vAccG, 4), 0)
            a.ds_write("ds_write_b128", v(vRSW), v(vAccG + 4, 4), 16)
            a.barrier()
            reduce_rs(8, vRD16, 2048, vF)
            tag(vF)
            a.salu("s_mov_b64", "exec", "0xffff")
            a.vstore("gp", "buffer_store_dwordx4", v(vF, 4), v(vI16), srd(R_WS), s(sGUst), "sc1")
            a.salu("s_mov_b64", "exec", -1)
        stamp()

        vOGo = vT[5]
        vMLo = vT[6]
        a.valu("v_lshrrev_b32", v(vT[3]), 3, v(vLane))
        a.valu("v_and_b32", v(vT[4]), 7, v(vLane))
        a.valu("v_lshlrev_b32", v(vT[4]), 4, v(vT[4]))
        a.valu("v_lshl_add_u32", v(vOGo), v(vT[3]), 8, v(vT[4]))
        a.valu("v_lshlrev_b32", v(vMLo), 4, v(vT[3]))
        if cfg.get("wait_before_og"):
            a.vwait(cfg["wait_before_og"] if has_gu else "wo3")
        lds_ = [(vG, vOGo, sOG, 0), (vG + 4, vOGo, sOG, 2048), (vG + 8, vMLo, sMLG, 0), (vG + 12, vMLo, sMLG, 128)]
        if has_gu:
            lds_.append((vG + 16, vOGo, sGUG, 0))
        gather("og", lds_)
        stamp()
        m0_, l0_, m1_, l1_ = vG + 8, vG + 9, vG + 12, vG + 13
        a.valu("v_and_b32", v(m0_), "0xffffff00", v(m0_))
        a.valu("v_and_b32", v(m1_), "0xffffff00", v(m1_))
        Mg = vF + 4
        a.valu("v_max_f32", v(Mg), v(m0_), v(m1_))
        bfly("v_max_f32", Mg, vF + 5, ["r8", "p16", "p32"])
        a.valu("v_sub_f32", v(m0_), v(m0_), v(Mg))
        a.valu("v_sub_f32", v(m1_), v(m1_), v(Mg))
        a.valu("v_mul_f32", v(m0_), LOG2E, v(m0_))
        a.valu("v_mul_f32", v(m1_), LOG2E, v(m1_))
        a.valu("v_exp_f32", v(m0_), v(m0_))
        a.valu("v_exp_f32", v(m1_), v(m1_))
        Lg = vF + 4
        a.valu("v_mul_f32", v(Lg), v(m0_), v(l0_))
        a.valu("v_fmac_f32", v(Lg), v(m1_), v(l1_))
        for e in range(4):
            a.valu("v_mul_f32", v(vF + e), v(m0_), v(vG + e))
        for e in range(4):
            a.valu("v_fmac_f32", v(vF + e), v(m1_), v(vG + 4 + e))
        bfly_multi("v_add_f32", [vF + e for e in range(5)], [vF + 8 + e for e in range(5)], ["r8", "p16", "p32"])
        a.valu("v_rcp_f32", v(Lg), v(Lg))
        for e in range(4):
            a.valu("v_mul_f32", v(vF + e), v(vF + e), v(Lg))
        for e in range(4):
            a.valu("v_cvt_pk_bf16_f32", v(vF + e), v(vF + e), v(vF + e))
        a.salu("s_lshr_b32", s(sC), s(sWV), 1)
        a.salu("s_mul_i32", s(sC), s(sC), OT_STR)
        a.salu("s_and_b32", s(sD), s(sWV), 1)
        a.salu("s_lshl_b32", s(sD), s(sD), 7)
        a.salu("s_add_u32", s(sC), s(sC), s(sD))
        a.valu("v_add_u32", v(vT[4]), s(sC), v(vT[4]))
        if has_gu:
            Gg = vG + 16
            bfly_multi("v_add_f32", [Gg + e for e in range(4)], [vG + 20 + e for e in range(4)], ["r8", "p16"])
            for e in range(4):
                rbf(Gg + e)
            for e in range(4):
                a.valu("v_mov_b32", v(vG + 20 + e), v(Gg + e))
            for e in range(4):
                a.valu("v_permlane32_swap_b32", v(Gg + e), v(vG + 20 + e))
            for e in range(4):
                a.valu("v_mul_f32", v(Gg + e), v(Gg + e), v(vG + 20 + e))
            for e in range(4):
                a.valu("v_cvt_pk_bf16_f32", v(Gg + e), v(Gg + e), v(Gg + e))
        a.salu("s_mov_b64", "exec", "0xff")
        a.ds_write("ds_write_b128", v(vT[4]), v(vF, 4), OT_OFF)
        if has_gu:
            a.ds_write("ds_write_b128", v(vT[4]), v(Gg, 4), HT_OFF)
        a.salu("s_mov_b64", "exec", -1)
        a.valu("v_and_b32", v(vT[1]), 15, v(vLane))
        a.valu("v_lshrrev_b32", v(vT[1]), 2, v(vT[1]))
        a.valu("v_mul_u32_u24", v(vT[1]), OT_STR, v(vT[1]))
        a.valu("v_lshrrev_b32", v(vT[2]), 4, v(vLane))
        a.valu("v_lshl_add_u32", v(vT[1]), v(vT[2]), 4, v(vT[1]))
        a.salu("s_lshr_b32", s(sC), s(sWV), 1)
        a.salu("s_lshl_b32", s(sC), s(sC), 6)
        a.valu("v_add_u32", v(vT[1]), s(sC), v(vT[1]))
        a.barrier()
        stamp()
        a.ds_read("ds_read_b128", v(vXD, 4), v(vT[1]), OT_OFF)
        if has_gu:
            a.ds_read("ds_read_b128", v(vXD + 4, 4), v(vT[1]), HT_OFF)
        a.lgkm(0)
        for t in range(8 if has_gu else 4):
            sparseA(vA + 2 * t, vXD + t)
        for t in range(4):
            a.vwait(f"wo{t}")
            gemv_step(vAcc, vA + 2 * t, vWO + 4 * t, t == 0)
        if has_gu:
            for t in range(4):
                a.vwait(f"wd{t}")
                gemv_step(vAcc, vA + 8 + 2 * t, vWD + 4 * t, False)
        a.ds_write("ds_write_b128", v(vRSW), v(vAcc, 4), 0)
        a.ds_write("ds_write_b128", v(vRSW), v(vAcc + 4, 4), 16)
        a.salu("s_and_b32", s(sC), s(sWV), 1)
        a.salu("s_lshl_b32", s(sC), s(sC), 11)
        a.salu("s_lshr_b32", s(sD), s(sWV), 1)
        a.salu("s_lshl_b32", s(sD), s(sD), 9)
        a.salu("s_add_u32", s(sC), s(sC), s(sD))
        a.salu("s_add_u32", s(sC), s(sC), RS_OFF)
        a.valu("v_add_u32", v(vT[3]), s(sC), v(vQ32))
        a.barrier()
        reduce_rs(4, vT[3], 4096, vF)
        tag(vF)
        a.salu("s_mov_b32", "exec_hi", 0)
        a.vstore("fp", "buffer_store_dwordx4", v(vF, 4), v(vQ32), srd(R_WS), s(sFPst), "sc1")
        a.salu("s_mov_b64", "exec", -1)
        stamp()
        Lfin = a.newlabel("Lfin")
        a.salu("s_cmp_eq_u32", s(sWV), 0)
        a.branch("s_cbranch_scc1", Lfin)
        stamp_store()
        a.raw("s_endpgm")
        a.label(Lfin)
        a.valu("v_lshrrev_b32", v(vT[3]), 2, v(vLane))
        a.valu("v_and_b32", v(vT[4]), 3, v(vLane))
        a.valu("v_lshlrev_b32", v(vT[5]), 4, v(vT[4]))
        a.valu("v_lshl_add_u32", v(vT[5]), v(vT[3]), 12, v(vT[5]))
        for i in range(1, 4):
            a.salu("s_add_u32", s(sA + i - 1), s(sFG), i * 65536)
        gather("fg", [(vG, vT[5], sFG, 0), (vG + 4, vT[5], sA, 0), (vG + 8, vT[5], sB, 0), (vG + 12, vT[5], sC, 0)])
        stamp()
        for e in range(4):
            a.valu("v_add_f32", v(vG + e), v(vG + e), v(vG + 4 + e))
            a.valu("v_add_f32", v(vG + 8 + e), v(vG + 8 + e), v(vG + 12 + e))
        for e in range(4):
            a.valu("v_add_f32", v(vG + e), v(vG + e), v(vG + 8 + e))
        bfly_multi("v_add_f32", [vG + e for e in range(4)], [vG + 4 + e for e in range(4)], ["r4", "r8", "p16", "p32"])
        for r in range(2):
            a.valu("v_lshlrev_b32", v(vF + 2 * r), 16, v(vXF + r))
            a.valu("v_and_b32", v(vF + 2 * r + 1), HI16, v(vXF + r))
        for e in range(4):
            a.valu("v_add_f32", v(vG + e), v(vG + e), v(vF + e))
        a.valu("v_cvt_pk_bf16_f32", v(vG + 4), v(vG), v(vG + 1))
        a.valu("v_cvt_pk_bf16_f32", v(vG + 5), v(vG + 2), v(vG + 3))
        a.valu("v_lshlrev_b32", v(vT[4]), 3, v(vT[4]))
        a.salu("s_mov_b64", "exec", "0xf")
        a.vstore("out", "buffer_store_dwordx2", v(vG + 4, 2), v(vT[4]), srd(R_OUT), s(sOutOff))
        if has_gu:
            Lne = a.newlabel("Lne")
            a.salu("s_cmp_lg_u32", "s2", 0)
            a.branch("s_cbranch_scc1", Lne)
            a.salu("s_add_u32", s(sTmp), s(sE), 1)
            a.salu("s_mov_b64", "exec", 1)
            a.valu("v_mov_b32", v(vT[3]), s(sTmp))
            a.vstore("epw", "buffer_store_dword", v(vT[3]), None, srd(R_WS), 0, "sc1")
            a.label(Lne)
        a.salu("s_mov_b64", "exec", -1)
        stamp()
        stamp_store()
        a.raw("s_endpgm")

    rest(True)
    a.label("L_nogu")
    a.vm = list(snap_vm)
    nstamp[0] = snap_stamp
    rest(False)
    a.label("L_end")
    a.raw("s_endpgm")
    a.lines.append("L_codeend:")
    return a, va


HEADER = """; Fused decode step: out = x + Attn(LN(x)) + BilinearGLU(LN(x)); one persistent launch, 256 workgroups x 8 waves.
; @launch grid=(256,1,1) block=(512,1,1) lds={lds}
.amdgcn_target "amdgcn-amd-amdhsa--gfx950"
.text
.globl {k}
.p2align 8
.type {k},@function
{k}:
"""
FOOTER = """.section .rodata,"a"
.p2align 6
.amdhsa_kernel {k}
  .amdhsa_next_free_vgpr {nv}
  .amdhsa_next_free_sgpr 102
  .amdhsa_accum_offset {acc}
  .amdhsa_group_segment_fixed_size 0
  .amdhsa_kernarg_size 96
  .amdhsa_user_sgpr_count 2
  .amdhsa_user_sgpr_kernarg_segment_ptr 1
  .amdhsa_system_sgpr_workgroup_id_x 1
.end_amdhsa_kernel
"""


def build(path, cfg):
    a, va = gen(cfg)
    nv = 256
    assert a.maxv <= nv, a.maxv
    txt = HEADER.format(k=KNAME, lds=LDS_BYTES) + a.text() + FOOTER.format(k=KNAME, nv=nv, acc=nv)
    open(path, "w").write(txt)
    return a


if __name__ == "__main__":
    out = sys.argv[1] if len(sys.argv) > 1 else "parallel_sum__sliding_block_cached__glu_gated_bilinear__decode.s"
    cfg = {}
    for kv in sys.argv[2:]:
        k, val = kv.split("=")
        try:
            val = int(val)
        except ValueError:
            pass
        cfg[k] = val
    a = build(out, cfg)
    print("wrote", out, "lines", len(a.lines), "maxv", a.maxv)
```
